```python
import torch

def _softmax(x, axis=-1):
    return torch.softmax(x, dim=axis)
def _gelu(x):
    return torch.nn.functional.gelu(x, approximate="tanh")
def _silu(x):
    return torch.nn.functional.silu(x)
def _sigmoid(x):
    return torch.sigmoid(x)
def _layernorm(x, axis=-1, eps=1e-5):
    m = x.mean(dim=axis, keepdim=True)
    v = x.var(dim=axis, keepdim=True, unbiased=False)
    return (x - m) / torch.sqrt(v + eps)
def _scatter_add(tgt, idx, src, axis=0):
    return tgt.clone().index_add_(axis, idx, src)
def _segment_sum(src, seg, n):
    out = torch.zeros((n,) + src.shape[1:], dtype=src.dtype)
    return out.index_add_(0, seg, src)
def _pad(x, pw):
    flat = tuple(v for pair in reversed(pw) for v in pair)
    return torch.nn.functional.pad(x, flat)

kernel_name = 'sequential_preLN__ssm_conv_h3__moe_arch_mod__prompt'

def setup_inputs():

    _w = (lambda a: (lambda t: t.to(torch.bfloat16) if t.is_floating_point() else t)(torch.as_tensor(a)))
    def _A_setup():
        B, S, D = 1, 2048, 640
        ks = 4
        return {
            "q": _w((lambda *s: torch.randn(*s, dtype=torch.bfloat16) * 0.05)(B, S, D)),
            "k": _w((lambda *s: torch.randn(*s, dtype=torch.bfloat16) * 0.2)(B, S, D)),
            "v": _w((lambda *s: torch.randn(*s, dtype=torch.bfloat16) * 0.2)(B, S, D)),
            "shift_k": _w((lambda *s: torch.randn(*s, dtype=torch.bfloat16) * 0.2)(D, ks) * 0.5),
            "ssm_k": _w((lambda *s: torch.randn(*s, dtype=torch.bfloat16) * 0.8)(D, S) * (1.0 / S ** 0.5)),
            "ssm_D": _w((lambda *s: torch.randn(*s, dtype=torch.bfloat16) * 0.2)(D)),
        }
    _A_in = _A_setup()

    def _B_setup():
        B, S, D, F, C = 1, 2048, 640, 1728, 8
        return {
            "x": _w((lambda *s: torch.randn(*s, dtype=torch.bfloat16) * 0.05)(B, S, D)),
            "w_r": _w((lambda *s: torch.randn(*s, dtype=torch.bfloat16) * 0.05)(D)),
            "w_gate": _w((lambda *s: torch.randn(*s, dtype=torch.bfloat16) * 0.05)(D, F)),
            "w_up": _w((lambda *s: torch.randn(*s, dtype=torch.bfloat16) * 0.05)(D, F)),
            "w_down": _w((lambda *s: torch.randn(*s, dtype=torch.bfloat16) * 0.05)(F, D)),
        }
    _B_in = _B_setup()

    return {
        "A_q": _A_in["q"],
        "A_k": _A_in["k"],
        "A_v": _A_in["v"],
        "A_shift_k": _A_in["shift_k"],
        "A_ssm_k": _A_in["ssm_k"],
        "A_ssm_D": _A_in["ssm_D"],
        "B_x": _B_in["x"],
        "B_w_r": _B_in["w_r"],
        "B_w_gate": _B_in["w_gate"],
        "B_w_up": _B_in["w_up"],
        "B_w_down": _B_in["w_down"],
    }

def reference(A_q, A_k, A_v, A_shift_k, A_ssm_k, A_ssm_D, B_x, B_w_r, B_w_gate, B_w_up, B_w_down):
    def _A_ref(q, k, v, shift_k, ssm_k, ssm_D):
        B, S, D = q.shape
        ks = shift_k.shape[-1]
        k_pad = _pad(k, ((0, 0), (ks - 1, 0), (0, 0)))
        k_shift = torch.zeros_like(k)
        for t in range(ks):
            k_shift = k_shift + k_pad[:, t:t + S, :] * shift_k[:, ks - 1 - t][None, None, :]
        kv = k_shift * v
        L = 2 * S
        kv_pad = _pad(kv, ((0, 0), (0, S), (0, 0)))
        kf_pad = _pad(ssm_k, ((0, 0), (0, S)))
        kv_f = (lambda x, axes=(-2,-1): torch.fft.rfft2(x.float(), dim=axes))(kv_pad[:, None, :, :], axes=(1, 2))
        kf_f = (lambda x, axes=(-2,-1): torch.fft.rfft2(x.float(), dim=axes))(kf_pad[:, None, :], axes=(1, 2))
        kf_f = (lambda x, *d: x.permute(*d))(kf_f, 1, 2, 0)
        y_f = kv_f * kf_f[None, :, :, :]
        y = (lambda x, s, axes=(-2,-1): torch.fft.irfft2(x, s=s, dim=axes).to(torch.bfloat16))(y_f, (1, L), axes=(1, 2))[:, 0, :S, :]
        y = y + kv * ssm_D[None, None, :]
        return q * y

    def _B_ref(x, w_r, w_gate, w_up, w_down):
        B, S, D = x.shape
        C = 8
        r = x @ w_r
        idx = torch.argsort(-r, axis=-1)[:, :C]
        idx_e = (lambda x, n, axis: torch.repeat_interleave(x, n, dim=axis))(idx.reshape(B, C, 1), D, axis=2)
        x_sel = (lambda x, i, axis: torch.take_along_dim(x, i, dim=axis))(x, idx_e, axis=1)
        g = _silu(x_sel @ w_gate)
        u = x_sel @ w_up
        y = (g * u) @ w_down
        r_sel = _sigmoid((lambda x, i, axis: torch.take_along_dim(x, i, dim=axis))(r, idx, axis=1))
        y = y * r_sel.reshape(B, C, 1)
        b_off = (torch.arange(B) * S).reshape(B, 1)
        flat_idx = (idx + b_off).reshape(B * C)
        zero = (x * 0.0).reshape(B * S, D)
        upd = _scatter_add(zero, flat_idx, y.reshape(B * C, D), axis=0)
        return x + upd.reshape(B, S, D)

    x = A_q
    h = x + _A_ref(_layernorm(x, axis=-1), A_k, A_v, A_shift_k, A_ssm_k, A_ssm_D)
    h2 = h + _B_ref(_layernorm(h, axis=-1), B_w_r, B_w_gate, B_w_up, B_w_down)
    return h2
```

```python
import sys

NAME = "sequential_preLN__ssm_conv_h3__moe_arch_mod__prompt"
OUT = "cdna_kernels/%s.s" % NAME

L = []
def e(s=""):
    L.append(s)

S_, D_, F_ = 2048, 640, 1728
ROWB = D_ * 2
TB = S_ * ROWB
WS_Z = 0
WS_H = TB
WS_HN = 2 * TB
WS_RK = 3 * TB
WS_GU = WS_RK + 8192
WS_TOP = WS_GU + 32768
WS_SIZE = 268435456

def srd(sd, sb, nbytes, add=0):
    if add:
        e(f"s_add_u32 s{sd}, s{sb}, {add}")
        e(f"s_addc_u32 s{sd+1}, s{sb+1}, 0")
    else:
        e(f"s_mov_b32 s{sd}, s{sb}")
        e(f"s_mov_b32 s{sd+1}, s{sb+1}")
    e(f"s_mov_b32 s{sd+2}, {nbytes}")
    e(f"s_mov_b32 s{sd+3}, 0x00020000")

def kernel_header(name):
    e(f".globl {name}")
    e(".p2align 8")
    e(f".type {name},@function")
    e(f"{name}:")

KD = []
def kernel_desc(name, vgpr, sgpr=102):
    acc = (vgpr + 3) // 4 * 4
    KD.append(f""".p2align 6
.amdhsa_kernel {name}
  .amdhsa_next_free_vgpr {vgpr}
  .amdhsa_next_free_sgpr {sgpr}
  .amdhsa_accum_offset {acc}
  .amdhsa_group_segment_fixed_size 0
  .amdhsa_kernarg_size 112
  .amdhsa_user_sgpr_count 2
  .amdhsa_user_sgpr_kernarg_segment_ptr 1
  .amdhsa_system_sgpr_workgroup_id_x 1
.end_amdhsa_kernel""")

def round_list(regs, tmp):
    n = len(regs)
    assert n % 2 == 0
    for i in range(0, n, 2):
        e(f"v_cvt_pk_bf16_f32 v{tmp[i//2]}, v{regs[i]}, v{regs[i+1]}")
    for i in range(0, n, 2):
        e(f"v_lshlrev_b32 v{regs[i]}, 16, v{tmp[i//2]}")
        e(f"v_and_b32 v{regs[i+1]}, 0xffff0000, v{tmp[i//2]}")

def wave_reduce(op, v, vt, sdst):
    e("s_nop 1")
    e(f"{op}_dpp v{v}, v{v}, v{v} quad_perm:[1,0,3,2] row_mask:0xf bank_mask:0xf")
    e("s_nop 1")
    e(f"{op}_dpp v{v}, v{v}, v{v} quad_perm:[2,3,0,1] row_mask:0xf bank_mask:0xf")
    e("s_nop 1")
    e(f"{op}_dpp v{v}, v{v}, v{v} row_half_mirror row_mask:0xf bank_mask:0xf")
    e("s_nop 1")
    e(f"{op}_dpp v{v}, v{v}, v{v} row_mirror row_mask:0xf bank_mask:0xf")
    e("s_nop 1")
    e(f"{op}_dpp v{v}, v{v}, v{v} row_bcast:15 row_mask:0xa bank_mask:0xf")
    e("s_nop 1")
    e(f"{op}_dpp v{v}, v{v}, v{v} row_bcast:31 row_mask:0xc bank_mask:0xf")
    e("s_nop 1")
    e(f"v_readlane_b32 s{sdst}, v{v}, 63")
    e("s_nop 3")

KE = 0
KO = 4164
XR = 8288
CHS = 12864
ZT = 4 * CHS
K1_LDS = ZT + 16384

def k1():
    name = "conv_kernel"
    kernel_header(name)
    e("s_cmp_ge_u32 s2, 160")
    e("s_cbranch_scc1 K1_END")
    e("s_load_dwordx4 s[4:7], s[0:1], 8")
    e("s_load_dwordx4 s[8:11], s[0:1], 24")
    e("s_load_dwordx2 s[12:13], s[0:1], 40")
    e("s_load_dwordx2 s[14:15], s[0:1], 104")
    e("s_waitcnt lgkmcnt(0)")
    e("s_lshl_b32 s16, s2, 5")
    e("s_add_u32 s8, s8, s16")
    e("s_addc_u32 s9, s9, 0")
    e("s_load_dwordx8 s[24:31], s[8:9], 0")
    e("s_lshl_b32 s17, s2, 3")
    e("s_add_u32 s12, s12, s17")
    e("s_addc_u32 s13, s13, 0")
    e("s_load_dwordx2 s[32:33], s[12:13], 0")
    srd(40, 4, TB)
    srd(44, 6, TB)
    srd(48, 10, D_ * S_ * 2)
    srd(52, 14, TB, WS_Z)
    e("v_and_b32 v1, 63, v0")
    e("v_lshrrev_b32 v2, 6, v0")
    e("s_nop 0")
    e("v_readfirstlane_b32 s18, v2")
    e("s_lshl_b32 s19, s2, 2")
    e("s_nop 2")
    e("s_add_u32 s19, s19, s18")
    e("s_lshl_b32 s19, s19, 12")
    e("v_lshlrev_b32 v3, 4, v1")
    e("v_add_u32 v3, s19, v3")
    e("v_subrev_u32 v4, 4, v3")
    for r in range(4):
        e(f"buffer_load_dwordx4 v[{224+4*r}:{227+4*r}], v3, s[48:51], 0 offen offset:{1024*r}")
    for r in range(4):
        e(f"buffer_load_dword v{240+r}, v4, s[48:51], 0 offen offset:{1024*r}")
    e("s_lshl_b32 s20, s2, 3")
    e("s_mov_b32 s21, 10240")
    e("v_mul_lo_u32 v5, v0, s21")
    e("v_add_u32 v5, s20, v5")
    e("v_subrev_u32 v6, 3840, v5")
    e("v_add_u32 v7, 5120, v5")
    KR = 20
    VR = 42
    for r in range(3):
        e(f"buffer_load_dwordx2 v[{KR+2*r}:{KR+2*r+1}], v6, s[40:43], 0 offen offset:{1280*r}")
    for r in range(4):
        e(f"buffer_load_dwordx2 v[{KR+6+2*r}:{KR+6+2*r+1}], v5, s[40:43], 0 offen offset:{1280*r}")
    for r in range(4):
        e(f"buffer_load_dwordx2 v[{KR+14+2*r}:{KR+14+2*r+1}], v7, s[40:43], 0 offen offset:{1280*r}")
    for r in range(4):
        e(f"buffer_load_dwordx2 v[{VR+2*r}:{VR+2*r+1}], v5, s[44:47], 0 offen offset:{1280*r}")
    for r in range(4):
        e(f"buffer_load_dwordx2 v[{VR+8+2*r}:{VR+8+2*r+1}], v7, s[44:47], 0 offen offset:{1280*r}")
    e("s_waitcnt lgkmcnt(0)")
    for c in range(4):
        e(f"s_lshl_b32 s{64+4*c+0}, s{24+2*c}, 16")
        e(f"s_and_b32 s{64+4*c+1}, s{24+2*c}, 0xffff0000")
        e(f"s_lshl_b32 s{64+4*c+2}, s{25+2*c}, 16")
        e(f"s_and_b32 s{64+4*c+3}, s{25+2*c}, 0xffff0000")
    e("s_cmp_lt_u32 s18, 2")
    e("s_cselect_b32 s34, s32, s33")
    e("s_and_b32 s35, s18, 1")
    e("s_cmp_eq_u32 s35, 0")
    e("s_cbranch_scc1 K1_DLO")
    e("s_and_b32 s34, s34, 0xffff0000")
    e("s_branch K1_DDONE")
    e("K1_DLO:")
    e("s_lshl_b32 s34, s34, 16")
    e("K1_DDONE:")
    e(f"s_mul_i32 s36, s18, {CHS}")
    e("v_mov_b32 v8, 0")
    e("v_mov_b32 v9, 0")
    e("v_mov_b32 v10, 0")
    e("v_mov_b32 v11, 0")
    e("v_lshlrev_b32 v12, 4, v1")
    e("v_add_u32 v12, s36, v12")
    e("v_cmp_gt_u32 vcc, 30, v1")
    e("s_and_saveexec_b64 s[38:39], vcc")
    e(f"ds_write_b128 v12, v[8:11] offset:{XR+4096}")
    e("s_mov_b64 exec, s[38:39]")
    e("v_lshlrev_b32 v12, 2, v1")
    e("v_add_u32 v12, s36, v12")
    e("v_cmp_gt_u32 vcc, 8, v1")
    e("s_and_saveexec_b64 s[38:39], vcc")
    e(f"ds_write_b32 v12, v8 offset:{KE}")
    e("s_mov_b64 exec, s[38:39]")
    e("v_cmp_gt_u32 vcc, 7, v1")
    e("s_and_saveexec_b64 s[38:39], vcc")
    e(f"ds_write_b32 v12, v8 offset:{KO}")
    e("s_mov_b64 exec, s[38:39]")
    e("s_waitcnt vmcnt(19)")
    e("v_cmp_eq_u32 vcc, 0, v1")
    e("s_nop 1")
    e("v_cndmask_b32 v240, v240, v8, vcc")
    e("v_lshlrev_b32 v12, 4, v1")
    e("v_add_u32 v12, s36, v12")
    for r in range(4):
        b = 224 + 4 * r
        e(f"ds_write_b128 v12, v[{b}:{b+3}] offset:{KE+32+1024*r}")
        e(f"v_alignbit_b32 v16, v{b}, v{240+r}, 16")
        e(f"v_alignbit_b32 v17, v{b+1}, v{b}, 16")
        e(f"v_alignbit_b32 v18, v{b+2}, v{b+1}, 16")
        e(f"v_alignbit_b32 v19, v{b+3}, v{b+2}, 16")
        e(f"ds_write_b128 v12, v[16:19] offset:{KO+28+1024*r}")
        e("s_nop 1")
    e("s_waitcnt vmcnt(0)")
    KF = list(range(64, 75))
    T = list(range(76, 84))
    U = list(range(84, 92))
    TMP = list(range(92, 96))
    e("v_lshlrev_b32 v13, 4, v0")
    e("v_sub_u32 v13, %d, v13" % (XR + 4080))
    for c in range(4):
        dw = c >> 1
        for r in range(11):
            src = KR + 2 * r + dw
            if c & 1:
                e(f"v_and_b32 v{KF[r]}, 0xffff0000, v{src}")
            else:
                e(f"v_lshlrev_b32 v{KF[r]}, 16, v{src}")
        w = lambda j: 64 + 4 * c + j
        for r in range(8):
            e(f"v_mul_f32 v{T[r]}, s{w(3)}, v{KF[r]}")
        round_list(T, TMP)
        for j in (2, 1, 0):
            for r in range(8):
                e(f"v_mul_f32 v{U[r]}, s{w(j)}, v{KF[r+3-j]}")
            round_list(U, TMP)
            for r in range(8):
                e(f"v_add_f32 v{T[r]}, v{T[r]}, v{U[r]}")
            round_list(T, TMP)
        for r in range(8):
            src = VR + 2 * r + dw
            if c & 1:
                e(f"v_and_b32 v{U[r]}, 0xffff0000, v{src}")
            else:
                e(f"v_lshlrev_b32 v{U[r]}, 16, v{src}")
        for r in range(8):
            e(f"v_mul_f32 v{T[r]}, v{T[r]}, v{U[r]}")
        for i in range(4):
            e(f"v_cvt_pk_bf16_f32 v{TMP[i]}, v{T[7-2*i]}, v{T[6-2*i]}")
        e(f"ds_write_b128 v13, v[{TMP[0]}:{TMP[3]}] offset:{c*CHS}")
        e("s_nop 1")
    e("s_waitcnt lgkmcnt(0)")
    e("s_barrier")
    e("v_and_b32 v2, 15, v1")
    e("v_lshrrev_b32 v3, 4, v1")
    e("v_lshlrev_b32 v4, 3, v3")
    e("v_add_u32 v4, v4, v2")
    e("v_lshlrev_b32 v4, 1, v4")
    e("v_and_b32 v5, 1, v2")
    e("v_cmp_eq_u32 vcc, 1, v5")
    e(f"v_mov_b32 v6, {KO}")
    e(f"v_mov_b32 v7, {KE+2}")
    e("v_cndmask_b32 v5, v6, v7, vcc")
    e("v_add_u32 v8, v4, v5")
    e("v_add_u32 v8, s36, v8")
    e("v_add_u32 v9, 1024, v8")
    e("v_add_u32 v10, 2048, v8")
    e("v_add_u32 v11, 3072, v8")
    e("v_lshlrev_b32 v12, 5, v2")
    e("v_lshlrev_b32 v13, 4, v3")
    e(f"v_sub_u32 v12, {XR+480}, v12")
    e("v_add_u32 v12, v12, v13")
    e("v_add_u32 v12, s36, v12")
    ACC = 128
    for i in range(32):
        e(f"v_mov_b32 v{ACC+i}, 0")
    SETS = [(64, 96), (160, 192)]
    def reads(c0, st):
        A, B = SETS[st]
        out = []
        for t in range(8):
            ar = 8 + t // 2
            off = (64 * c0 + 512 * (t & 1)) // 4
            out.append(f"ds_read2_b32 v[{A+4*t}:{A+4*t+1}], v{ar} offset0:{off} offset1:{off+1}")
            out.append(f"ds_read2_b32 v[{A+4*t+2}:{A+4*t+3}], v{ar} offset0:{off+2} offset1:{off+3}")
        for wp in range(8):
            out.append(f"ds_read_b128 v[{B+4*wp}:{B+4*wp+3}], v12 offset:{64*c0+512*(7-wp)}")
        return out
    for x in reads(0, 0):
        e(x)
    for c0 in range(8):
        st = c0 & 1
        A, B = SETS[st]
        e("s_waitcnt lgkmcnt(0)")
        nxt = reads(c0 + 1, st ^ 1) if c0 < 7 else []
        cnt = 0
        for j in range(8):
            for t in range(j + 1):
                a = A + 4 * t
                b = B + 4 * (j - t)
                d = ACC + 4 * j
                e(f"v_mfma_f32_16x16x32_bf16 v[{d}:{d+3}], v[{a}:{a+3}], v[{b}:{b+3}], v[{d}:{d+3}]")
                cnt += 1
                for _ in range(2):
                    if nxt:
                        e(nxt.pop(0))
    e("s_nop 15")
    e("v_lshlrev_b32 v4, 5, v2")
    e("v_lshlrev_b32 v5, 3, v3")
    e("v_add_u32 v4, v4, v5")
    e(f"v_sub_u32 v4, {XR+4088}, v4")
    e("v_add_u32 v4, s36, v4")
    e("v_subrev_u32 v4, 3584, v4")
    e("v_lshlrev_b32 v5, 7, v2")
    e("v_lshlrev_b32 v6, 5, v3")
    e("v_add_u32 v5, v5, v6")
    e("s_lshl_b32 s37, s18, 1")
    e(f"s_add_u32 s37, s37, {ZT}")
    e("v_add_u32 v5, s37, v5")
    for j in range(8):
        e(f"ds_read_b64 v[{64+2*j}:{65+2*j}], v4 offset:{512*(7-j)}")
    e("s_waitcnt lgkmcnt(0)")
    for j in range(8):
        a = ACC + 4 * j
        Y = [a, a + 1, a + 2, a + 3]
        round_list(Y, [20, 21])
        e(f"v_and_b32 v24, 0xffff0000, v{65+2*j}")
        e(f"v_lshlrev_b32 v25, 16, v{65+2*j}")
        e(f"v_and_b32 v26, 0xffff0000, v{64+2*j}")
        e(f"v_lshlrev_b32 v27, 16, v{64+2*j}")
        for i in range(4):
            e(f"v_mul_f32 v{24+i}, s34, v{24+i}")
        round_list([24, 25, 26, 27], [20, 21])
        for i in range(4):
            e(f"v_add_f32 v{24+i}, v{24+i}, v{Y[i]}")
        e("v_cvt_pk_bf16_f32 v20, v24, v25")
        e("v_cvt_pk_bf16_f32 v21, v26, v27")
        e(f"ds_write_b16 v5, v20 offset:{2048*j}")
        e(f"ds_write_b16_d16_hi v5, v20 offset:{2048*j+8}")
        e(f"ds_write_b16 v5, v21 offset:{2048*j+16}")
        e(f"ds_write_b16_d16_hi v5, v21 offset:{2048*j+24}")
    e("s_waitcnt lgkmcnt(0)")
    e("s_barrier")
    e("v_lshlrev_b32 v4, 6, v0")
    for i in range(4):
        e(f"ds_read_b128 v[{64+4*i}:{67+4*i}], v4 offset:{ZT+16*i}")
    e("v_mul_lo_u32 v5, v0, s21")
    e("v_add_u32 v5, s20, v5")
    e("v_add_u32 v7, 5120, v5")
    e("s_waitcnt lgkmcnt(0)")
    for r in range(8):
        ad = 5 if r < 4 else 7
        e(f"buffer_store_dwordx2 v[{64+2*r}:{65+2*r}], v{ad}, s[52:55], 0 offen offset:{1280*(r&3)}")
    e("K1_END:")
    e("s_endpgm")
    kernel_desc(name, 248)

def unpack10(src4, src1, dst):
    for i in range(4):
        e(f"v_lshlrev_b32 v{dst[2*i]}, 16, v{src4+i}")
        e(f"v_and_b32 v{dst[2*i+1]}, 0xffff0000, v{src4+i}")
    e(f"v_lshlrev_b32 v{dst[8]}, 16, v{src1}")
    e(f"v_and_b32 v{dst[9]}, 0xffff0000, v{src1}")

def layernorm(X, OUTR, TMP, sc):
    e(f"v_add_f32 v60, v{X[0]}, v{X[1]}")
    for i in range(2, 10):
        e(f"v_add_f32 v60, v60, v{X[i]}")
    wave_reduce("v_add_f32", 60, None, sc)
    e(f"v_mov_b32 v61, 0x3acccccd")
    e(f"v_mul_f32 v61, s{sc}, v61")
    e(f"v_sub_f32 v62, v{X[0]}, v61")
    e("v_mul_f32 v60, v62, v62")
    for i in range(1, 10):
        e(f"v_sub_f32 v62, v{X[i]}, v61")
        e("v_fmac_f32 v60, v62, v62")
    wave_reduce("v_add_f32", 60, None, sc + 1)
    e(f"v_mov_b32 v62, 0x3acccccd")
    e(f"v_mul_f32 v62, s{sc+1}, v62")
    e("v_cvt_pk_bf16_f32 v63, v61, v62")
    e("v_lshlrev_b32 v61, 16, v63")
    e("v_and_b32 v62, 0xffff0000, v63")
    e("v_add_f32 v62, 0x3727c5ac, v62")
    e("v_cvt_pk_bf16_f32 v63, v62, v62")
    e("v_lshlrev_b32 v62, 16, v63")
    e("v_sqrt_f32 v62, v62")
    e("s_nop 0")
    e("v_cvt_pk_bf16_f32 v63, v62, v62")
    e("v_lshlrev_b32 v62, 16, v63")
    e("v_rcp_f32 v63, v62")
    e("s_nop 0")
    for i in range(10):
        e(f"v_sub_f32 v{OUTR[i]}, v{X[i]}, v61")
    round_list(OUTR, TMP)
    for i in range(10):
        e(f"v_mul_f32 v60, v{OUTR[i]}, v63")
        e(f"v_fma_f32 v{OUTR[i]}, -v60, v62, v{OUTR[i]}")
        e(f"v_fma_f32 v{OUTR[i]}, v{OUTR[i]}, v63, v60")
    round_list(OUTR, TMP)

def pack_store(R, P, voff4, voff1, srdr):
    for i in range(5):
        e(f"v_cvt_pk_bf16_f32 v{P+i}, v{R[2*i]}, v{R[2*i+1]}")
    e(f"buffer_store_dwordx4 v[{P}:{P+3}], v{voff4}, s[{srdr}:{srdr+3}], 0 offen")
    e(f"buffer_store_dword v{P+4}, v{voff1}, s[{srdr}:{srdr+3}], 0 offen")

def k2():
    name = "rows_kernel"
    kernel_header(name)
    e("s_cmp_ge_u32 s2, 512")
    e("s_cbranch_scc1 K2_END")
    e("s_load_dwordx2 s[4:5], s[0:1], 0")
    e("s_load_dwordx2 s[6:7], s[0:1], 56")
    e("s_load_dwordx2 s[8:9], s[0:1], 88")
    e("s_load_dwordx2 s[14:15], s[0:1], 104")
    e("s_waitcnt lgkmcnt(0)")
    srd(40, 4, TB)
    srd(44, 6, ROWB)
    srd(48, 8, TB)
    srd(52, 14, TB, WS_Z)
    srd(56, 14, TB, WS_H)
    srd(60, 14, TB, WS_HN)
    srd(64, 14, 8192, WS_RK)
    e("v_and_b32 v1, 63, v0")
    e("v_lshrrev_b32 v2, 6, v0")
    e("s_lshl_b32 s16, s2, 2")
    e("v_add_u32 v2, s16, v2")
    e("s_movk_i32 s17, 1280")
    e("v_mul_lo_u32 v3, v2, s17")
    e("v_lshlrev_b32 v4, 4, v1")
    e("v_lshlrev_b32 v5, 2, v1")
    e("v_add_u32 v5, 1024, v5")
    e("v_add_u32 v6, v3, v4")
    e("v_add_u32 v7, v3, v5")
    e("buffer_load_dwordx4 v[8:11], v6, s[40:43], 0 offen")
    e("buffer_load_dword v12, v7, s[40:43], 0 offen")
    e("buffer_load_dwordx4 v[16:19], v6, s[52:55], 0 offen")
    e("buffer_load_dword v20, v7, s[52:55], 0 offen")
    e("buffer_load_dwordx4 v[24:27], v4, s[44:47], 0 offen")
    e("buffer_load_dword v28, v5, s[44:47], 0 offen")
    X = list(range(64, 74))
    QN = list(range(74, 84))
    Z = list(range(84, 94))
    H = list(range(94, 104))
    TMP = list(range(104, 109))
    e("s_waitcnt vmcnt(4)")
    unpack10(8, 12, X)
    layernorm(X, QN, TMP, 20)
    e("s_waitcnt vmcnt(2)")
    unpack10(16, 20, Z)
    for i in range(10):
        e(f"v_mul_f32 v{QN[i]}, v{QN[i]}, v{Z[i]}")
    round_list(QN, TMP)
    for i in range(10):
        e(f"v_add_f32 v{H[i]}, v{X[i]}, v{QN[i]}")
    round_list(H, TMP)
    pack_store(H, 112, 6, 7, 56)
    HN = QN
    layernorm(H, HN, TMP, 22)
    pack_store(HN, 120, 6, 7, 60)
    e("s_waitcnt vmcnt(4)")
    W = Z
    unpack10(24, 28, W)
    e(f"v_mul_f32 v60, v{HN[0]}, v{W[0]}")
    for i in range(1, 10):
        e(f"v_fmac_f32 v60, v{HN[i]}, v{W[i]}")
    wave_reduce("v_add_f32", 60, None, 24)
    for i in range(10):
        e(f"v_add_f32 v{X[i]}, v{H[i]}, v{HN[i]}")
    pack_store(X, 128, 6, 7, 48)
    e("v_mov_b32 v60, s24")
    e("v_cvt_pk_bf16_f32 v61, v60, v60")
    e("v_and_b32 v61, 0xffff, v61")
    e("v_xor_b32 v62, 0xffff, v61")
    e("v_or_b32 v63, 0x8000, v61")
    e("v_cmp_gt_u32 vcc, 0x8000, v61")
    e("s_nop 1")
    e("v_cndmask_b32 v61, v62, v63, vcc")
    e("v_lshlrev_b32 v61, 11, v61")
    e("v_sub_u32 v62, 2047, v2")
    e("v_or_b32 v61, v61, v62")
    e("v_lshlrev_b32 v62, 2, v2")
    e("v_cmp_eq_u32 vcc, 0, v1")
    e("s_and_saveexec_b64 s[30:31], vcc")
    e("buffer_store_dword v61, v62, s[64:67], 0 offen")
    e("K2_END:")
    e("s_endpgm")
    kernel_desc(name, 136)

K3_WL = 0
K3_CAND = 40960
K3_TOP = 40960 + 128
K3_RED = 41216
K3_LDS = K3_RED + 8192

def k3():
    name = "gateup_kernel"
    kernel_header(name)
    e("s_cmp_ge_u32 s2, 108")
    e("s_cbranch_scc1 K3_END")
    e("s_load_dwordx4 s[4:7], s[0:1], 64")
    e("s_load_dwordx2 s[14:15], s[0:1], 104")
    e("s_waitcnt lgkmcnt(0)")
    srd(40, 4, D_ * F_ * 2)
    srd(44, 6, D_ * F_ * 2)
    srd(48, 14, TB, WS_HN)
    srd(52, 14, 8192, WS_RK)
    srd(56, 14, 8 * F_ * 2, WS_GU)
    srd(60, 14, 32, WS_TOP)
    e("v_and_b32 v1, 63, v0")
    e("v_lshrrev_b32 v2, 6, v0")
    e("s_nop 0")
    e("v_readfirstlane_b32 s18, v2")
    e("v_lshlrev_b32 v3, 5, v0")
    e("buffer_load_dwordx4 v[8:11], v3, s[52:55], 0 offen")
    e("buffer_load_dwordx4 v[12:15], v3, s[52:55], 0 offen offset:16")
    e("s_mul_i32 s19, s18, 160")
    e("v_lshrrev_b32 v4, 1, v1")
    e("v_add_u32 v4, s19, v4")
    e("s_movk_i32 s20, 3456")
    e("v_mul_lo_u32 v4, v4, s20")
    e("v_and_b32 v5, 1, v1")
    e("v_lshlrev_b32 v5, 4, v5")
    e("v_add_u32 v4, v4, v5")
    e("s_lshl_b32 s21, s2, 5")
    e("v_add_u32 v4, s21, v4")
    for i in range(5):
        e(f"s_mov_b32 s22, {32*3456*i}")
        e(f"buffer_load_dwordx4 v[{64+4*i}:{67+4*i}], v4, s[40:43], s22 offen")
        e(f"buffer_load_dwordx4 v[{84+4*i}:{87+4*i}], v4, s[44:47], s22 offen")
    e("s_waitcnt vmcnt(10)")
    K = list(range(8, 16))
    e("v_mov_b32 v20, 0")
    for rnd in range(8):
        e(f"v_max3_u32 v16, v{K[0]}, v{K[1]}, v{K[2]}")
        e(f"v_max3_u32 v17, v{K[3]}, v{K[4]}, v{K[5]}")
        e(f"v_max3_u32 v16, v16, v{K[6]}, v{K[7]}")
        e("v_max_u32 v16, v16, v17")
        wave_reduce("v_max_u32", 16, None, 24)
        e(f"v_writelane_b32 v20, s24, {rnd}")
        if rnd < 7:
            for k in K:
                e(f"v_cmp_ne_u32 vcc, s24, v{k}")
                e("s_nop 1")
                e(f"v_cndmask_b32 v{k}, 0, v{k}, vcc")
    e("s_lshl_b32 s23, s18, 5")
    e("v_lshlrev_b32 v21, 2, v1")
    e("v_add_u32 v21, s23, v21")
    e("v_cmp_gt_u32 vcc, 8, v1")
    e("s_and_saveexec_b64 s[30:31], vcc")
    e(f"ds_write_b32 v21, v20 offset:{K3_CAND}")
    e("s_mov_b64 exec, s[30:31]")
    e("s_waitcnt lgkmcnt(0)")
    e("s_barrier")
    e("v_and_b32 v21, 31, v1")
    e("v_lshlrev_b32 v21, 2, v21")
    e(f"ds_read_b32 v22, v21 offset:{K3_CAND}")
    e("v_mov_b32 v23, 0")
    for i in range(8):
        e(f"ds_read_b128 v[{24+4*i}:{27+4*i}], v23 offset:{K3_CAND+16*i}")
    e("s_waitcnt lgkmcnt(0)")
    e("v_mov_b32 v21, 0")
    for i in range(32):
        e(f"v_cmp_gt_u32 vcc, v{24+i}, v22")
        e("s_nop 1")
        e("v_addc_co_u32 v21, vcc, 0, v21, vcc")
    e("v_lshlrev_b32 v23, 2, v21")
    e("v_cmp_gt_u32 vcc, 8, v21")
    e("s_and_saveexec_b64 s[30:31], vcc")
    e(f"ds_write_b32 v23, v22 offset:{K3_TOP}")
    e("s_mov_b64 exec, s[30:31]")
    e("s_waitcnt lgkmcnt(0)")
    e("s_barrier")
    e("v_and_b32 v21, 7, v1")
    e("v_lshlrev_b32 v21, 2, v21")
    e(f"ds_read_b32 v22, v21 offset:{K3_TOP}")
    e("s_waitcnt lgkmcnt(0)")
    e("s_cmp_lg_u32 s2, 0")
    e("s_cbranch_scc1 K3_NOTOP")
    e("s_cmp_lg_u32 s18, 0")
    e("s_cbranch_scc1 K3_NOTOP")
    e("v_cmp_gt_u32 vcc, 8, v1")
    e("s_and_saveexec_b64 s[30:31], vcc")
    e("buffer_store_dword v22, v21, s[60:63], 0 offen")
    e("s_mov_b64 exec, s[30:31]")
    e("K3_NOTOP:")
    e("v_and_b32 v22, 2047, v22")
    e("v_sub_u32 v22, 2047, v22")
    e("s_movk_i32 s20, 1280")
    e("v_mul_lo_u32 v22, v22, s20")
    e("v_lshrrev_b32 v3, 4, v1")
    e("v_lshlrev_b32 v23, 4, v3")
    e("v_add_u32 v22, v22, v23")
    e("s_mul_i32 s19, s18, 320")
    e("v_add_u32 v22, s19, v22")
    for ks in range(5):
        e(f"buffer_load_dwordx4 v[{104+4*ks}:{107+4*ks}], v22, s[48:51], 0 offen offset:{64*ks}")
    e("s_mul_i32 s24, s18, 10240")
    e("v_lshlrev_b32 v4, 4, v1")
    e("v_add_u32 v4, s24, v4")
    e("s_waitcnt vmcnt(5)")
    for i in range(5):
        e(f"ds_write_b128 v4, v[{64+4*i}:{67+4*i}] offset:{1024*i}")
        e(f"ds_write_b128 v4, v[{84+4*i}:{87+4*i}] offset:{5120+1024*i}")
    e("v_and_b32 v2, 15, v1")
    e("v_lshlrev_b32 v5, 8, v3")
    e("v_lshlrev_b32 v6, 1, v2")
    e("v_add_u32 v5, v5, v6")
    e("v_add_u32 v5, s24, v5")
    for i in range(8):
        e(f"v_mov_b32 v{124+i}, 0")
    e("s_waitcnt lgkmcnt(0)")
    for ks in range(5):
        for mat in range(2):
            bq = 24 + 4 * mat
            for i in range(8):
                off = mat * 5120 + (32 * ks + i) * 32
                e(f"ds_read_u16 v{32+8*mat+i}, v5 offset:{off}")
        e("s_waitcnt vmcnt(0) lgkmcnt(0)")
        for mat in range(2):
            for i in range(4):
                e(f"v_lshl_or_b32 v{24+4*mat+i}, v{32+8*mat+2*i+1}, 16, v{32+8*mat+2*i}")
        e("s_nop 1")
        e(f"v_mfma_f32_16x16x32_bf16 v[124:127], v[{104+4*ks}:{107+4*ks}], v[24:27], v[124:127]")
        e(f"v_mfma_f32_16x16x32_bf16 v[128:131], v[{104+4*ks}:{107+4*ks}], v[28:31], v[128:131]")
        e("s_nop 7")
    e("s_nop 7")
    e("s_lshl_b32 s25, s18, 11")
    e("v_lshlrev_b32 v4, 8, v3")
    e("v_lshlrev_b32 v6, 2, v2")
    e("v_add_u32 v4, v4, v6")
    e("v_add_u32 v4, s25, v4")
    for mat in range(2):
        for i in range(4):
            e(f"ds_write_b32 v4, v{124+4*mat+i} offset:{K3_RED+1024*mat+64*i}")
    e("s_waitcnt lgkmcnt(0)")
    e("s_barrier")
    e("s_cmp_ge_u32 s18, 2")
    e("s_cbranch_scc1 K3_END")
    e("v_lshlrev_b32 v4, 2, v0")
    for w in range(4):
        e(f"ds_read_b32 v{8+w}, v4 offset:{K3_RED+2048*w}")
        e(f"ds_read_b32 v{12+w}, v4 offset:{K3_RED+2048*w+1024}")
    e("s_waitcnt lgkmcnt(0)")
    e("v_add_f32 v8, v8, v9")
    e("v_add_f32 v10, v10, v11")
    e("v_add_f32 v8, v8, v10")
    e("v_add_f32 v12, v12, v13")
    e("v_add_f32 v14, v14, v15")
    e("v_add_f32 v9, v12, v14")
    round_list([8, 9], [10])
    e("v_mul_f32 v10, 0xbfb8aa3b, v8")
    e("v_exp_f32 v10, v10")
    e("s_nop 0")
    e("v_add_f32 v10, 1.0, v10")
    e("v_rcp_f32 v11, v10")
    e("s_nop 0")
    e("v_mul_f32 v12, v8, v11")
    e("v_fma_f32 v13, -v12, v10, v8")
    e("v_fma_f32 v12, v13, v11, v12")
    e("v_cvt_pk_bf16_f32 v13, v12, v12")
    e("v_lshlrev_b32 v12, 16, v13")
    e("v_mul_f32 v12, v12, v9")
    e("v_cvt_pk_bf16_f32 v13, v12, v12")
    e("v_lshrrev_b32 v5, 4, v0")
    e("s_movk_i32 s20, 3456")
    e("v_mul_lo_u32 v5, v5, s20")
    e("v_and_b32 v6, 15, v0")
    e("v_lshlrev_b32 v6, 1, v6")
    e("v_add_u32 v5, v5, v6")
    e("v_add_u32 v5, s21, v5")
    e("buffer_store_short v13, v5, s[56:59], 0 offen")
    e("K3_END:")
    e("s_endpgm")
    kernel_desc(name, 136)

K4_RED = 9 * 6144
K4_LDS = K4_RED + 9 * 1024

def k4():
    name = "down_kernel"
    kernel_header(name)
    e("s_cmp_ge_u32 s2, 40")
    e("s_cbranch_scc1 K4_END")
    e("s_load_dwordx2 s[4:5], s[0:1], 80")
    e("s_load_dwordx2 s[8:9], s[0:1], 88")
    e("s_load_dwordx2 s[14:15], s[0:1], 104")
    e("s_waitcnt lgkmcnt(0)")
    srd(40, 4, D_ * F_ * 2)
    srd(44, 8, TB)
    srd(48, 14, TB, WS_HN)
    srd(52, 14, TB, WS_H)
    srd(56, 14, 8 * F_ * 2, WS_GU)
    srd(60, 14, 32, WS_TOP)
    e("v_and_b32 v1, 63, v0")
    e("v_lshrrev_b32 v2, 6, v0")
    e("s_nop 0")
    e("v_readfirstlane_b32 s18, v2")
    e("s_nop 3")
    e("s_mul_i32 s19, s18, 192")
    e("v_lshrrev_b32 v4, 1, v1")
    e("v_add_u32 v4, s19, v4")
    e("s_movk_i32 s20, 1280")
    e("v_mul_lo_u32 v4, v4, s20")
    e("v_and_b32 v5, 1, v1")
    e("v_lshlrev_b32 v5, 4, v5")
    e("v_add_u32 v4, v4, v5")
    e("s_lshl_b32 s21, s2, 5")
    e("v_add_u32 v4, s21, v4")
    for i in range(6):
        e(f"s_mov_b32 s22, {32*1280*i}")
        e(f"buffer_load_dwordx4 v[{64+4*i}:{67+4*i}], v4, s[40:43], s22 offen")
    e("v_and_b32 v21, 7, v1")
    e("s_movk_i32 s20, 3456")
    e("v_mul_lo_u32 v22, v21, s20")
    e("v_lshrrev_b32 v3, 4, v1")
    e("v_lshlrev_b32 v23, 4, v3")
    e("v_add_u32 v22, v22, v23")
    e("s_mul_i32 s19, s18, 384")
    e("v_add_u32 v22, s19, v22")
    for ks in range(6):
        e(f"buffer_load_dwordx4 v[{104+4*ks}:{107+4*ks}], v22, s[56:59], 0 offen offset:{64*ks}")
    e("s_mul_i32 s24, s18, 6144")
    e("v_lshlrev_b32 v4, 4, v1")
    e("v_add_u32 v4, s24, v4")
    e("s_waitcnt vmcnt(6)")
    for i in range(6):
        e(f"ds_write_b128 v4, v[{64+4*i}:{67+4*i}] offset:{1024*i}")
    e("v_and_b32 v2, 15, v1")
    e("v_lshlrev_b32 v5, 8, v3")
    e("v_lshlrev_b32 v6, 1, v2")
    e("v_add_u32 v5, v5, v6")
    e("v_add_u32 v5, s24, v5")
    for i in range(4):
        e(f"v_mov_b32 v{128+i}, 0")
    e("s_waitcnt lgkmcnt(0)")
    for ks in range(6):
        for i in range(8):
            off = (32 * ks + i) * 32
            e(f"ds_read_u16 v{32+i}, v5 offset:{off}")
        e("s_waitcnt vmcnt(0) lgkmcnt(0)")
        for i in range(4):
            e(f"v_lshl_or_b32 v{24+i}, v{32+2*i+1}, 16, v{32+2*i}")
        e("s_nop 1")
        e(f"v_mfma_f32_16x16x32_bf16 v[128:131], v[{104+4*ks}:{107+4*ks}], v[24:27], v[128:131]")
        e("s_nop 7")
    e("s_nop 7")
    e("s_lshl_b32 s25, s18, 10")
    e("v_lshlrev_b32 v4, 8, v3")
    e("v_lshlrev_b32 v6, 2, v2")
    e("v_add_u32 v4, v4, v6")
    e("v_add_u32 v4, s25, v4")
    for i in range(4):
        e(f"ds_write_b32 v4, v{128+i} offset:{K4_RED+64*i}")
    e("s_waitcnt lgkmcnt(0)")
    e("s_barrier")
    e("s_cmp_ge_u32 s18, 2")
    e("s_cbranch_scc1 K4_END")
    e("v_lshrrev_b32 v5, 4, v0")
    e("v_lshlrev_b32 v6, 2, v5")
    e("buffer_load_dword v20, v6, s[60:63], 0 offen")
    e("v_lshlrev_b32 v4, 2, v0")
    for w in range(9):
        e(f"ds_read_b32 v{8+w}, v4 offset:{K4_RED+1024*w}")
    e("s_waitcnt vmcnt(0)")
    e("v_and_b32 v21, 2047, v20")
    e("v_sub_u32 v21, 2047, v21")
    e("s_movk_i32 s20, 1280")
    e("v_mul_lo_u32 v21, v21, s20")
    e("v_and_b32 v6, 15, v0")
    e("v_lshlrev_b32 v6, 1, v6")
    e("v_add_u32 v21, v21, v6")
    e("v_add_u32 v21, s21, v21")
    e("buffer_load_ushort v22, v21, s[52:55], 0 offen")
    e("buffer_load_ushort v23, v21, s[48:51], 0 offen")
    e("v_lshrrev_b32 v24, 11, v20")
    e("v_and_b32 v25, 0x7fff, v24")
    e("v_xor_b32 v26, 0xffff, v24")
    e("v_cmp_lt_u32 vcc, 0x7fff, v24")
    e("s_nop 1")
    e("v_cndmask_b32 v24, v26, v25, vcc")
    e("v_lshlrev_b32 v24, 16, v24")
    e("v_mul_f32 v25, 0xbfb8aa3b, v24")
    e("v_exp_f32 v25, v25")
    e("s_nop 0")
    e("v_add_f32 v25, 1.0, v25")
    e("v_rcp_f32 v26, v25")
    e("s_nop 0")
    e("v_fma_f32 v27, -v26, v25, 1.0")
    e("v_fma_f32 v26, v27, v26, v26")
    e("v_cvt_pk_bf16_f32 v27, v26, v26")
    e("v_lshlrev_b32 v26, 16, v27")
    e("s_waitcnt lgkmcnt(0)")
    for w in range(1, 9):
        e(f"v_add_f32 v8, v8, v{8+w}")
    e("v_cvt_pk_bf16_f32 v9, v8, v8")
    e("v_lshlrev_b32 v8, 16, v9")
    e("v_mul_f32 v8, v8, v26")
    e("v_cvt_pk_bf16_f32 v9, v8, v8")
    e("v_lshlrev_b32 v8, 16, v9")
    e("s_waitcnt vmcnt(0)")
    e("v_lshlrev_b32 v22, 16, v22")
    e("v_lshlrev_b32 v23, 16, v23")
    e("v_add_f32 v8, v8, v23")
    e("v_cvt_pk_bf16_f32 v9, v8, v8")
    e("v_lshlrev_b32 v8, 16, v9")
    e("v_add_f32 v8, v8, v22")
    e("v_cvt_pk_bf16_f32 v9, v8, v8")
    e("buffer_store_short v9, v21, s[44:47], 0 offen")
    e("K4_END:")
    e("s_endpgm")
    kernel_desc(name, 136)

def main():
    hdr = open(OUT + ".ref").read().split("; Override launch geometry")[0]
    e(hdr.rstrip("\n"))
    e(f"; @launch kernel=conv_kernel grid=(160,1,1) block=(256,1,1) lds={K1_LDS}")
    e(f"; @launch kernel=rows_kernel grid=(512,1,1) block=(256,1,1) lds=0")
    e(f"; @launch kernel=gateup_kernel grid=(108,1,1) block=(256,1,1) lds={K3_LDS}")
    e(f"; @launch kernel=down_kernel grid=(40,1,1) block=(576,1,1) lds={K4_LDS}")
    e('.amdgcn_target "amdgcn-amd-amdhsa--gfx950"')
    e(".text")
    k1(); k2(); k3(); k4()
    e('.section .rodata,"a"')
    for k in KD:
        e(k)
    open(OUT, "w").write("\n".join(L) + "\n")

main()
```

```python
import sys, os
EXP = os.environ.get("EXP", "")

NAME = "sequential_preLN__ssm_conv_h3__moe_arch_mod__prompt"
OUT0 = "cdna_kernels/%s.s" % NAME
OUT = os.environ.get("OUT", OUT0)

L = []
def e(s=""):
    L.append(s)

S_, D_, F_ = 2048, 640, 1728
ROWB = D_ * 2
TB = S_ * ROWB
WS_Z = 0
WS_H = TB
WS_HN = 2 * TB
WS_RK = 3 * TB
WS_GU = WS_RK + 8192
WS_TOP = WS_GU + 32768
WS_SIZE = 268435456

def srd(sd, sb, nbytes, add=0):
    if add:
        e(f"s_add_u32 s{sd}, s{sb}, {add}")
        e(f"s_addc_u32 s{sd+1}, s{sb+1}, 0")
    else:
        e(f"s_mov_b32 s{sd}, s{sb}")
        e(f"s_mov_b32 s{sd+1}, s{sb+1}")
    e(f"s_mov_b32 s{sd+2}, {nbytes}")
    e(f"s_mov_b32 s{sd+3}, 0x00020000")

def kernel_header(name):
    e(f".globl {name}")
    e(".p2align 8")
    e(f".type {name},@function")
    e(f"{name}:")

KD = []
def kernel_desc(name, vgpr, sgpr=102):
    acc = (vgpr + 3) // 4 * 4
    KD.append(f""".p2align 6
.amdhsa_kernel {name}
  .amdhsa_next_free_vgpr {vgpr}
  .amdhsa_next_free_sgpr {sgpr}
  .amdhsa_accum_offset {acc}
  .amdhsa_group_segment_fixed_size 0
  .amdhsa_kernarg_size 112
  .amdhsa_user_sgpr_count 2
  .amdhsa_user_sgpr_kernarg_segment_ptr 1
  .amdhsa_system_sgpr_workgroup_id_x 1
.end_amdhsa_kernel""")

def round_list(regs, tmp):
    n = len(regs)
    assert n % 2 == 0
    for i in range(0, n, 2):
        e(f"v_cvt_pk_bf16_f32 v{tmp[i//2]}, v{regs[i]}, v{regs[i+1]}")
    for i in range(0, n, 2):
        e(f"v_lshlrev_b32 v{regs[i]}, 16, v{tmp[i//2]}")
        e(f"v_and_b32 v{regs[i+1]}, 0xffff0000, v{tmp[i//2]}")

def wave_reduce(op, v, vt, sdst):
    e("s_nop 1")
    e(f"{op}_dpp v{v}, v{v}, v{v} quad_perm:[1,0,3,2] row_mask:0xf bank_mask:0xf")
    e("s_nop 1")
    e(f"{op}_dpp v{v}, v{v}, v{v} quad_perm:[2,3,0,1] row_mask:0xf bank_mask:0xf")
    e("s_nop 1")
    e(f"{op}_dpp v{v}, v{v}, v{v} row_half_mirror row_mask:0xf bank_mask:0xf")
    e("s_nop 1")
    e(f"{op}_dpp v{v}, v{v}, v{v} row_mirror row_mask:0xf bank_mask:0xf")
    e("s_nop 1")
    e(f"{op}_dpp v{v}, v{v}, v{v} row_bcast:15 row_mask:0xa bank_mask:0xf")
    e("s_nop 1")
    e(f"{op}_dpp v{v}, v{v}, v{v} row_bcast:31 row_mask:0xc bank_mask:0xf")
    e("s_nop 1")
    e(f"v_readlane_b32 s{sdst}, v{v}, 63")
    e("s_nop 3")

KE = 0
KO = 4164
XR = 8288
CHS = 12864
ZT = 4 * CHS
K1_LDS = ZT + 16384

def k1():
    name = "conv_kernel"
    kernel_header(name)
    e("s_cmp_ge_u32 s2, 160")
    e("s_cbranch_scc1 K1_END")
    e("s_load_dwordx4 s[4:7], s[0:1], 8")
    e("s_load_dwordx4 s[8:11], s[0:1], 24")
    e("s_load_dwordx2 s[12:13], s[0:1], 40")
    e("s_load_dwordx2 s[14:15], s[0:1], 104")
    e("s_waitcnt lgkmcnt(0)")
    e("s_lshl_b32 s16, s2, 5")
    e("s_add_u32 s8, s8, s16")
    e("s_addc_u32 s9, s9, 0")
    e("s_load_dwordx8 s[24:31], s[8:9], 0")
    e("s_lshl_b32 s17, s2, 3")
    e("s_add_u32 s12, s12, s17")
    e("s_addc_u32 s13, s13, 0")
    e("s_load_dwordx2 s[32:33], s[12:13], 0")
    srd(40, 4, TB)
    srd(44, 6, TB)
    srd(48, 10, D_ * S_ * 2)
    srd(52, 14, TB, WS_Z)
    e("v_and_b32 v1, 63, v0")
    e("v_lshrrev_b32 v2, 6, v0")
    e("s_nop 0")
    e("v_readfirstlane_b32 s18, v2")
    e("s_lshl_b32 s19, s2, 2")
    e("s_nop 2")
    e("s_add_u32 s19, s19, s18")
    e("s_lshl_b32 s19, s19, 12")
    e("v_lshlrev_b32 v3, 4, v1")
    e("v_add_u32 v3, s19, v3")
    e("v_subrev_u32 v4, 4, v3")
    for r in range(4):
        e(f"buffer_load_dwordx4 v[{224+4*r}:{227+4*r}], v3, s[48:51], 0 offen offset:{1024*r}")
    for r in range(4):
        e(f"buffer_load_dword v{240+r}, v4, s[48:51], 0 offen offset:{1024*r}")
    e("s_lshl_b32 s20, s2, 3")
    e("s_mov_b32 s21, 10240")
    e("v_mul_lo_u32 v5, v0, s21")
    e("v_add_u32 v5, s20, v5")
    e("v_subrev_u32 v6, 3840, v5")
    e("v_add_u32 v7, 5120, v5")
    if "nokv" in EXP:
        e("v_mov_b32 v5, 0"); e("v_mov_b32 v6, 0"); e("v_mov_b32 v7, 0")
    KR = 20
    VR = 42
    for r in range(3):
        e(f"buffer_load_dwordx2 v[{KR+2*r}:{KR+2*r+1}], v6, s[40:43], 0 offen offset:{1280*r}")
    for r in range(4):
        e(f"buffer_load_dwordx2 v[{KR+6+2*r}:{KR+6+2*r+1}], v5, s[40:43], 0 offen offset:{1280*r}")
    for r in range(4):
        e(f"buffer_load_dwordx2 v[{KR+14+2*r}:{KR+14+2*r+1}], v7, s[40:43], 0 offen offset:{1280*r}")
    for r in range(4):
        e(f"buffer_load_dwordx2 v[{VR+2*r}:{VR+2*r+1}], v5, s[44:47], 0 offen offset:{1280*r}")
    for r in range(4):
        e(f"buffer_load_dwordx2 v[{VR+8+2*r}:{VR+8+2*r+1}], v7, s[44:47], 0 offen offset:{1280*r}")
    e("s_waitcnt lgkmcnt(0)")
    for c in range(4):
        e(f"s_lshl_b32 s{64+4*c+0}, s{24+2*c}, 16")
        e(f"s_and_b32 s{64+4*c+1}, s{24+2*c}, 0xffff0000")
        e(f"s_lshl_b32 s{64+4*c+2}, s{25+2*c}, 16")
        e(f"s_and_b32 s{64+4*c+3}, s{25+2*c}, 0xffff0000")
    e("s_cmp_lt_u32 s18, 2")
    e("s_cselect_b32 s34, s32, s33")
    e("s_and_b32 s35, s18, 1")
    e("s_cmp_eq_u32 s35, 0")
    e("s_cbranch_scc1 K1_DLO")
    e("s_and_b32 s34, s34, 0xffff0000")
    e("s_branch K1_DDONE")
    e("K1_DLO:")
    e("s_lshl_b32 s34, s34, 16")
    e("K1_DDONE:")
    e(f"s_mul_i32 s36, s18, {CHS}")
    e("v_mov_b32 v8, 0")
    e("v_mov_b32 v9, 0")
    e("v_mov_b32 v10, 0")
    e("v_mov_b32 v11, 0")
    e("v_lshlrev_b32 v12, 4, v1")
    e("v_add_u32 v12, s36, v12")
    e("v_cmp_gt_u32 vcc, 30, v1")
    e("s_and_saveexec_b64 s[38:39], vcc")
    e(f"ds_write_b128 v12, v[8:11] offset:{XR+4096}")
    e("s_mov_b64 exec, s[38:39]")
    e("v_lshlrev_b32 v12, 2, v1")
    e("v_add_u32 v12, s36, v12")
    e("v_cmp_gt_u32 vcc, 8, v1")
    e("s_and_saveexec_b64 s[38:39], vcc")
    e(f"ds_write_b32 v12, v8 offset:{KE}")
    e("s_mov_b64 exec, s[38:39]")
    e("v_cmp_gt_u32 vcc, 7, v1")
    e("s_and_saveexec_b64 s[38:39], vcc")
    e(f"ds_write_b32 v12, v8 offset:{KO}")
    e("s_mov_b64 exec, s[38:39]")
    e("s_waitcnt vmcnt(19)")
    e("v_cmp_eq_u32 vcc, 0, v1")
    e("s_nop 1")
    e("v_cndmask_b32 v240, v240, v8, vcc")
    e("v_lshlrev_b32 v12, 4, v1")
    e("v_add_u32 v12, s36, v12")
    for r in range(4):
        b = 224 + 4 * r
        e(f"ds_write_b128 v12, v[{b}:{b+3}] offset:{KE+32+1024*r}")
        e(f"v_alignbit_b32 v16, v{b}, v{240+r}, 16")
        e(f"v_alignbit_b32 v17, v{b+1}, v{b}, 16")
        e(f"v_alignbit_b32 v18, v{b+2}, v{b+1}, 16")
        e(f"v_alignbit_b32 v19, v{b+3}, v{b+2}, 16")
        e(f"ds_write_b128 v12, v[16:19] offset:{KO+28+1024*r}")
        e("s_nop 1")
    e("s_waitcnt vmcnt(0)")
    KF = list(range(64, 75))
    T = list(range(76, 84))
    U = list(range(84, 92))
    TMP = list(range(92, 96))
    e("v_lshlrev_b32 v13, 4, v0")
    e("v_sub_u32 v13, %d, v13" % (XR + 4080))
    for c in range(4):
        dw = c >> 1
        for r in range(11):
            src = KR + 2 * r + dw
            if c & 1:
                e(f"v_and_b32 v{KF[r]}, 0xffff0000, v{src}")
            else:
                e(f"v_lshlrev_b32 v{KF[r]}, 16, v{src}")
        w = lambda j: 64 + 4 * c + j
        for r in range(8):
            e(f"v_mul_f32 v{T[r]}, s{w(3)}, v{KF[r]}")
        round_list(T, TMP)
        for j in (2, 1, 0):
            for r in range(8):
                e(f"v_mul_f32 v{U[r]}, s{w(j)}, v{KF[r+3-j]}")
            round_list(U, TMP)
            for r in range(8):
                e(f"v_add_f32 v{T[r]}, v{T[r]}, v{U[r]}")
            round_list(T, TMP)
        for r in range(8):
            src = VR + 2 * r + dw
            if c & 1:
                e(f"v_and_b32 v{U[r]}, 0xffff0000, v{src}")
            else:
                e(f"v_lshlrev_b32 v{U[r]}, 16, v{src}")
        for r in range(8):
            e(f"v_mul_f32 v{T[r]}, v{T[r]}, v{U[r]}")
        for i in range(4):
            e(f"v_cvt_pk_bf16_f32 v{TMP[i]}, v{T[7-2*i]}, v{T[6-2*i]}")
        e(f"ds_write_b128 v13, v[{TMP[0]}:{TMP[3]}] offset:{c*CHS}")
        e("s_nop 1")
    e("s_waitcnt lgkmcnt(0)")
    e("s_barrier")
    e("v_and_b32 v2, 15, v1")
    e("v_lshrrev_b32 v3, 4, v1")
    e("v_lshlrev_b32 v4, 3, v3")
    e("v_add_u32 v4, v4, v2")
    e("v_lshlrev_b32 v4, 1, v4")
    e("v_and_b32 v5, 1, v2")
    e("v_cmp_eq_u32 vcc, 1, v5")
    e(f"v_mov_b32 v6, {KO}")
    e(f"v_mov_b32 v7, {KE+2}")
    e("v_cndmask_b32 v5, v6, v7, vcc")
    e("v_add_u32 v8, v4, v5")
    e("v_add_u32 v8, s36, v8")
    e("v_add_u32 v9, 1024, v8")
    e("v_add_u32 v10, 2048, v8")
    e("v_add_u32 v11, 3072, v8")
    e("v_lshlrev_b32 v12, 5, v2")
    e("v_lshlrev_b32 v13, 4, v3")
    e(f"v_sub_u32 v12, {XR+480}, v12")
    e("v_add_u32 v12, v12, v13")
    e("v_add_u32 v12, s36, v12")
    ACC = 128
    for i in range(32):
        e(f"v_mov_b32 v{ACC+i}, 0")
    SETS = [(64, 96), (160, 192)]
    def reads(c0, st):
        A, B = SETS[st]
        out = []
        for t in range(8):
            ar = 8 + t // 2
            off = (64 * c0 + 512 * (t & 1)) // 4
            out.append(f"ds_read2_b32 v[{A+4*t}:{A+4*t+1}], v{ar} offset0:{off} offset1:{off+1}")
            out.append(f"ds_read2_b32 v[{A+4*t+2}:{A+4*t+3}], v{ar} offset0:{off+2} offset1:{off+3}")
        for wp in range(8):
            out.append(f"ds_read_b128 v[{B+4*wp}:{B+4*wp+3}], v12 offset:{64*c0+512*(7-wp)}")
        return out
    for x in reads(0, 0):
        e(x)
    for c0 in range(8 if "noloop" not in EXP else 0):
        st = c0 & 1
        A, B = SETS[st]
        e("s_waitcnt lgkmcnt(0)")
        nxt = reads(c0 + 1, st ^ 1) if c0 < 7 else []
        cnt = 0
        for j in range(8):
            for t in range(j + 1):
                a = A + 4 * t
                b = B + 4 * (j - t)
                d = ACC + 4 * j
                e(f"v_mfma_f32_16x16x32_bf16 v[{d}:{d+3}], v[{a}:{a+3}], v[{b}:{b+3}], v[{d}:{d+3}]")
                cnt += 1
                for _ in range(2):
                    if nxt:
                        e(nxt.pop(0))
    e("s_nop 15")
    e("v_lshlrev_b32 v4, 5, v2")
    e("v_lshlrev_b32 v5, 3, v3")
    e("v_add_u32 v4, v4, v5")
    e(f"v_sub_u32 v4, {XR+4088}, v4")
    e("v_add_u32 v4, s36, v4")
    e("v_subrev_u32 v4, 3584, v4")
    e("v_lshlrev_b32 v5, 7, v2")
    e("v_lshlrev_b32 v6, 5, v3")
    e("v_add_u32 v5, v5, v6")
    e("s_lshl_b32 s37, s18, 1")
    e(f"s_add_u32 s37, s37, {ZT}")
    e("v_add_u32 v5, s37, v5")
    for j in range(8):
        e(f"ds_read_b64 v[{64+2*j}:{65+2*j}], v4 offset:{512*(7-j)}")
    e("s_waitcnt lgkmcnt(0)")
    for j in range(8):
        a = ACC + 4 * j
        Y = [a, a + 1, a + 2, a + 3]
        round_list(Y, [20, 21])
        e(f"v_and_b32 v24, 0xffff0000, v{65+2*j}")
        e(f"v_lshlrev_b32 v25, 16, v{65+2*j}")
        e(f"v_and_b32 v26, 0xffff0000, v{64+2*j}")
        e(f"v_lshlrev_b32 v27, 16, v{64+2*j}")
        for i in range(4):
            e(f"v_mul_f32 v{24+i}, s34, v{24+i}")
        round_list([24, 25, 26, 27], [20, 21])
        for i in range(4):
            e(f"v_add_f32 v{24+i}, v{24+i}, v{Y[i]}")
        e("v_cvt_pk_bf16_f32 v20, v24, v25")
        e("v_cvt_pk_bf16_f32 v21, v26, v27")
        e(f"ds_write_b16 v5, v20 offset:{2048*j}")
        e(f"ds_write_b16_d16_hi v5, v20 offset:{2048*j+8}")
        e(f"ds_write_b16 v5, v21 offset:{2048*j+16}")
        e(f"ds_write_b16_d16_hi v5, v21 offset:{2048*j+24}")
    e("s_waitcnt lgkmcnt(0)")
    e("s_barrier")
    e("v_lshlrev_b32 v4, 6, v0")
    for i in range(4):
        e(f"ds_read_b128 v[{64+4*i}:{67+4*i}], v4 offset:{ZT+16*i}")
    e("v_mul_lo_u32 v5, v0, s21")
    e("v_add_u32 v5, s20, v5")
    e("v_add_u32 v7, 5120, v5")
    if "nost" in EXP:
        e("v_lshlrev_b32 v5, 6, v0"); e("v_mov_b32 v7, v5")
    e("s_waitcnt lgkmcnt(0)")
    for r in range(8):
        ad = 5 if r < 4 else 7
        e(f"buffer_store_dwordx2 v[{64+2*r}:{65+2*r}], v{ad}, s[52:55], 0 offen offset:{1280*(r&3)}")
    e("K1_END:")
    e("s_endpgm")
    kernel_desc(name, 248)

def unpack10(src4, src1, dst):
    for i in range(4):
        e(f"v_lshlrev_b32 v{dst[2*i]}, 16, v{src4+i}")
        e(f"v_and_b32 v{dst[2*i+1]}, 0xffff0000, v{src4+i}")
    e(f"v_lshlrev_b32 v{dst[8]}, 16, v{src1}")
    e(f"v_and_b32 v{dst[9]}, 0xffff0000, v{src1}")

def layernorm(X, OUTR, TMP, sc):
    e(f"v_add_f32 v60, v{X[0]}, v{X[1]}")
    for i in range(2, 10):
        e(f"v_add_f32 v60, v60, v{X[i]}")
    wave_reduce("v_add_f32", 60, None, sc)
    e(f"v_mov_b32 v61, 0x3acccccd")
    e(f"v_mul_f32 v61, s{sc}, v61")
    e(f"v_sub_f32 v62, v{X[0]}, v61")
    e("v_mul_f32 v60, v62, v62")
    for i in range(1, 10):
        e(f"v_sub_f32 v62, v{X[i]}, v61")
        e("v_fmac_f32 v60, v62, v62")
    wave_reduce("v_add_f32", 60, None, sc + 1)
    e(f"v_mov_b32 v62, 0x3acccccd")
    e(f"v_mul_f32 v62, s{sc+1}, v62")
    e("v_cvt_pk_bf16_f32 v63, v61, v62")
    e("v_lshlrev_b32 v61, 16, v63")
    e("v_and_b32 v62, 0xffff0000, v63")
    e("v_add_f32 v62, 0x3727c5ac, v62")
    e("v_cvt_pk_bf16_f32 v63, v62, v62")
    e("v_lshlrev_b32 v62, 16, v63")
    e("v_sqrt_f32 v62, v62")
    e("s_nop 0")
    e("v_cvt_pk_bf16_f32 v63, v62, v62")
    e("v_lshlrev_b32 v62, 16, v63")
    e("v_rcp_f32 v63, v62")
    e("s_nop 0")
    for i in range(10):
        e(f"v_sub_f32 v{OUTR[i]}, v{X[i]}, v61")
    round_list(OUTR, TMP)
    for i in range(10):
        e(f"v_mul_f32 v60, v{OUTR[i]}, v63")
        e(f"v_fma_f32 v{OUTR[i]}, -v60, v62, v{OUTR[i]}")
        e(f"v_fma_f32 v{OUTR[i]}, v{OUTR[i]}, v63, v60")
    round_list(OUTR, TMP)

def pack_store(R, P, voff4, voff1, srdr):
    for i in range(5):
        e(f"v_cvt_pk_bf16_f32 v{P+i}, v{R[2*i]}, v{R[2*i+1]}")
    e(f"buffer_store_dwordx4 v[{P}:{P+3}], v{voff4}, s[{srdr}:{srdr+3}], 0 offen")
    e(f"buffer_store_dword v{P+4}, v{voff1}, s[{srdr}:{srdr+3}], 0 offen")

def k2():
    name = "rows_kernel"
    kernel_header(name)
    e("s_cmp_ge_u32 s2, 512")
    e("s_cbranch_scc1 K2_END")
    e("s_load_dwordx2 s[4:5], s[0:1], 0")
    e("s_load_dwordx2 s[6:7], s[0:1], 56")
    e("s_load_dwordx2 s[8:9], s[0:1], 88")
    e("s_load_dwordx2 s[14:15], s[0:1], 104")
    e("s_waitcnt lgkmcnt(0)")
    srd(40, 4, TB)
    srd(44, 6, ROWB)
    srd(48, 8, TB)
    srd(52, 14, TB, WS_Z)
    srd(56, 14, TB, WS_H)
    srd(60, 14, TB, WS_HN)
    srd(64, 14, 8192, WS_RK)
    e("v_and_b32 v1, 63, v0")
    e("v_lshrrev_b32 v2, 6, v0")
    e("s_lshl_b32 s16, s2, 2")
    e("v_add_u32 v2, s16, v2")
    e("s_movk_i32 s17, 1280")
    e("v_mul_lo_u32 v3, v2, s17")
    e("v_lshlrev_b32 v4, 4, v1")
    e("v_lshlrev_b32 v5, 2, v1")
    e("v_add_u32 v5, 1024, v5")
    e("v_add_u32 v6, v3, v4")
    e("v_add_u32 v7, v3, v5")
    e("buffer_load_dwordx4 v[8:11], v6, s[40:43], 0 offen")
    e("buffer_load_dword v12, v7, s[40:43], 0 offen")
    e("buffer_load_dwordx4 v[16:19], v6, s[52:55], 0 offen")
    e("buffer_load_dword v20, v7, s[52:55], 0 offen")
    e("buffer_load_dwordx4 v[24:27], v4, s[44:47], 0 offen")
    e("buffer_load_dword v28, v5, s[44:47], 0 offen")
    X = list(range(64, 74))
    QN = list(range(74, 84))
    Z = list(range(84, 94))
    H = list(range(94, 104))
    TMP = list(range(104, 109))
    e("s_waitcnt vmcnt(4)")
    unpack10(8, 12, X)
    layernorm(X, QN, TMP, 20)
    e("s_waitcnt vmcnt(2)")
    unpack10(16, 20, Z)
    for i in range(10):
        e(f"v_mul_f32 v{QN[i]}, v{QN[i]}, v{Z[i]}")
    round_list(QN, TMP)
    for i in range(10):
        e(f"v_add_f32 v{H[i]}, v{X[i]}, v{QN[i]}")
    round_list(H, TMP)
    pack_store(H, 112, 6, 7, 56)
    HN = QN
    layernorm(H, HN, TMP, 22)
    pack_store(HN, 120, 6, 7, 60)
    e("s_waitcnt vmcnt(4)")
    W = Z
    unpack10(24, 28, W)
    e(f"v_mul_f32 v60, v{HN[0]}, v{W[0]}")
    for i in range(1, 10):
        e(f"v_fmac_f32 v60, v{HN[i]}, v{W[i]}")
    wave_reduce("v_add_f32", 60, None, 24)
    for i in range(10):
        e(f"v_add_f32 v{X[i]}, v{H[i]}, v{HN[i]}")
    pack_store(X, 128, 6, 7, 48)
    e("v_mov_b32 v60, s24")
    e("v_cvt_pk_bf16_f32 v61, v60, v60")
    e("v_and_b32 v61, 0xffff, v61")
    e("v_xor_b32 v62, 0xffff, v61")
    e("v_or_b32 v63, 0x8000, v61")
    e("v_cmp_gt_u32 vcc, 0x8000, v61")
    e("s_nop 1")
    e("v_cndmask_b32 v61, v62, v63, vcc")
    e("v_lshlrev_b32 v61, 11, v61")
    e("v_sub_u32 v62, 2047, v2")
    e("v_or_b32 v61, v61, v62")
    e("v_lshlrev_b32 v62, 2, v2")
    e("v_cmp_eq_u32 vcc, 0, v1")
    e("s_and_saveexec_b64 s[30:31], vcc")
    e("buffer_store_dword v61, v62, s[64:67], 0 offen")
    e("K2_END:")
    e("s_endpgm")
    kernel_desc(name, 136)

K3_WL = 0
K3_CAND = 40960
K3_TOP = 40960 + 128
K3_RED = 41216
K3_LDS = K3_RED + 8192

def k3():
    name = "gateup_kernel"
    kernel_header(name)
    e("s_cmp_ge_u32 s2, 108")
    e("s_cbranch_scc1 K3_END")
    e("s_load_dwordx4 s[4:7], s[0:1], 64")
    e("s_load_dwordx2 s[14:15], s[0:1], 104")
    e("s_waitcnt lgkmcnt(0)")
    srd(40, 4, D_ * F_ * 2)
    srd(44, 6, D_ * F_ * 2)
    srd(48, 14, TB, WS_HN)
    srd(52, 14, 8192, WS_RK)
    srd(56, 14, 8 * F_ * 2, WS_GU)
    srd(60, 14, 32, WS_TOP)
    e("v_and_b32 v1, 63, v0")
    e("v_lshrrev_b32 v2, 6, v0")
    e("s_nop 0")
    e("v_readfirstlane_b32 s18, v2")
    e("v_lshlrev_b32 v3, 5, v0")
    e("buffer_load_dwordx4 v[8:11], v3, s[52:55], 0 offen")
    e("buffer_load_dwordx4 v[12:15], v3, s[52:55], 0 offen offset:16")
    e("s_mul_i32 s19, s18, 160")
    e("v_lshrrev_b32 v4, 1, v1")
    e("v_add_u32 v4, s19, v4")
    e("s_movk_i32 s20, 3456")
    e("v_mul_lo_u32 v4, v4, s20")
    e("v_and_b32 v5, 1, v1")
    e("v_lshlrev_b32 v5, 4, v5")
    e("v_add_u32 v4, v4, v5")
    e("s_lshl_b32 s21, s2, 5")
    e("v_add_u32 v4, s21, v4")
    for i in range(5):
        e(f"s_mov_b32 s22, {32*3456*i}")
        e(f"buffer_load_dwordx4 v[{64+4*i}:{67+4*i}], v4, s[40:43], s22 offen")
        e(f"buffer_load_dwordx4 v[{84+4*i}:{87+4*i}], v4, s[44:47], s22 offen")
    e("s_waitcnt vmcnt(10)")
    K = list(range(8, 16))
    e("v_mov_b32 v20, 0")
    for rnd in range(8):
        e(f"v_max3_u32 v16, v{K[0]}, v{K[1]}, v{K[2]}")
        e(f"v_max3_u32 v17, v{K[3]}, v{K[4]}, v{K[5]}")
        e(f"v_max3_u32 v16, v16, v{K[6]}, v{K[7]}")
        e("v_max_u32 v16, v16, v17")
        wave_reduce("v_max_u32", 16, None, 24)
        e(f"v_writelane_b32 v20, s24, {rnd}")
        if rnd < 7:
            for k in K:
                e(f"v_cmp_ne_u32 vcc, s24, v{k}")
                e("s_nop 1")
                e(f"v_cndmask_b32 v{k}, 0, v{k}, vcc")
    e("s_lshl_b32 s23, s18, 5")
    e("v_lshlrev_b32 v21, 2, v1")
    e("v_add_u32 v21, s23, v21")
    e("v_cmp_gt_u32 vcc, 8, v1")
    e("s_and_saveexec_b64 s[30:31], vcc")
    e(f"ds_write_b32 v21, v20 offset:{K3_CAND}")
    e("s_mov_b64 exec, s[30:31]")
    e("s_waitcnt lgkmcnt(0)")
    e("s_barrier")
    e("v_and_b32 v21, 31, v1")
    e("v_lshlrev_b32 v21, 2, v21")
    e(f"ds_read_b32 v22, v21 offset:{K3_CAND}")
    e("v_mov_b32 v23, 0")
    for i in range(8):
        e(f"ds_read_b128 v[{24+4*i}:{27+4*i}], v23 offset:{K3_CAND+16*i}")
    e("s_waitcnt lgkmcnt(0)")
    e("v_mov_b32 v21, 0")
    for i in range(32):
        e(f"v_cmp_gt_u32 vcc, v{24+i}, v22")
        e("s_nop 1")
        e("v_addc_co_u32 v21, vcc, 0, v21, vcc")
    e("v_lshlrev_b32 v23, 2, v21")
    e("v_cmp_gt_u32 vcc, 8, v21")
    e("s_and_saveexec_b64 s[30:31], vcc")
    e(f"ds_write_b32 v23, v22 offset:{K3_TOP}")
    e("s_mov_b64 exec, s[30:31]")
    e("s_waitcnt lgkmcnt(0)")
    e("s_barrier")
    e("v_and_b32 v21, 7, v1")
    e("v_lshlrev_b32 v21, 2, v21")
    e(f"ds_read_b32 v22, v21 offset:{K3_TOP}")
    e("s_waitcnt lgkmcnt(0)")
    e("s_cmp_lg_u32 s2, 0")
    e("s_cbranch_scc1 K3_NOTOP")
    e("s_cmp_lg_u32 s18, 0")
    e("s_cbranch_scc1 K3_NOTOP")
    e("v_cmp_gt_u32 vcc, 8, v1")
    e("s_and_saveexec_b64 s[30:31], vcc")
    e("buffer_store_dword v22, v21, s[60:63], 0 offen")
    e("s_mov_b64 exec, s[30:31]")
    e("K3_NOTOP:")
    e("v_and_b32 v22, 2047, v22")
    e("v_sub_u32 v22, 2047, v22")
    e("s_movk_i32 s20, 1280")
    e("v_mul_lo_u32 v22, v22, s20")
    e("v_lshrrev_b32 v3, 4, v1")
    e("v_lshlrev_b32 v23, 4, v3")
    e("v_add_u32 v22, v22, v23")
    e("s_mul_i32 s19, s18, 320")
    e("v_add_u32 v22, s19, v22")
    for ks in range(5):
        e(f"buffer_load_dwordx4 v[{104+4*ks}:{107+4*ks}], v22, s[48:51], 0 offen offset:{64*ks}")
    e("s_mul_i32 s24, s18, 10240")
    e("v_lshlrev_b32 v4, 4, v1")
    e("v_add_u32 v4, s24, v4")
    e("s_waitcnt vmcnt(5)")
    for i in range(5):
        e(f"ds_write_b128 v4, v[{64+4*i}:{67+4*i}] offset:{1024*i}")
        e(f"ds_write_b128 v4, v[{84+4*i}:{87+4*i}] offset:{5120+1024*i}")
    e("v_and_b32 v2, 15, v1")
    e("v_lshlrev_b32 v5, 8, v3")
    e("v_lshlrev_b32 v6, 1, v2")
    e("v_add_u32 v5, v5, v6")
    e("v_add_u32 v5, s24, v5")
    for i in range(8):
        e(f"v_mov_b32 v{124+i}, 0")
    e("s_waitcnt lgkmcnt(0)")
    for ks in range(5):
        for mat in range(2):
            bq = 24 + 4 * mat
            for i in range(8):
                off = mat * 5120 + (32 * ks + i) * 32
                e(f"ds_read_u16 v{32+8*mat+i}, v5 offset:{off}")
        e("s_waitcnt vmcnt(0) lgkmcnt(0)")
        for mat in range(2):
            for i in range(4):
                e(f"v_lshl_or_b32 v{24+4*mat+i}, v{32+8*mat+2*i+1}, 16, v{32+8*mat+2*i}")
        e("s_nop 1")
        e(f"v_mfma_f32_16x16x32_bf16 v[124:127], v[{104+4*ks}:{107+4*ks}], v[24:27], v[124:127]")
        e(f"v_mfma_f32_16x16x32_bf16 v[128:131], v[{104+4*ks}:{107+4*ks}], v[28:31], v[128:131]")
        e("s_nop 7")
    e("s_nop 7")
    e("s_lshl_b32 s25, s18, 11")
    e("v_lshlrev_b32 v4, 8, v3")
    e("v_lshlrev_b32 v6, 2, v2")
    e("v_add_u32 v4, v4, v6")
    e("v_add_u32 v4, s25, v4")
    for mat in range(2):
        for i in range(4):
            e(f"ds_write_b32 v4, v{124+4*mat+i} offset:{K3_RED+1024*mat+64*i}")
    e("s_waitcnt lgkmcnt(0)")
    e("s_barrier")
    e("s_cmp_ge_u32 s18, 2")
    e("s_cbranch_scc1 K3_END")
    e("v_lshlrev_b32 v4, 2, v0")
    for w in range(4):
        e(f"ds_read_b32 v{8+w}, v4 offset:{K3_RED+2048*w}")
        e(f"ds_read_b32 v{12+w}, v4 offset:{K3_RED+2048*w+1024}")
    e("s_waitcnt lgkmcnt(0)")
    e("v_add_f32 v8, v8, v9")
    e("v_add_f32 v10, v10, v11")
    e("v_add_f32 v8, v8, v10")
    e("v_add_f32 v12, v12, v13")
    e("v_add_f32 v14, v14, v15")
    e("v_add_f32 v9, v12, v14")
    round_list([8, 9], [10])
    e("v_mul_f32 v10, 0xbfb8aa3b, v8")
    e("v_exp_f32 v10, v10")
    e("s_nop 0")
    e("v_add_f32 v10, 1.0, v10")
    e("v_rcp_f32 v11, v10")
    e("s_nop 0")
    e("v_mul_f32 v12, v8, v11")
    e("v_fma_f32 v13, -v12, v10, v8")
    e("v_fma_f32 v12, v13, v11, v12")
    e("v_cvt_pk_bf16_f32 v13, v12, v12")
    e("v_lshlrev_b32 v12, 16, v13")
    e("v_mul_f32 v12, v12, v9")
    e("v_cvt_pk_bf16_f32 v13, v12, v12")
    e("v_lshrrev_b32 v5, 4, v0")
    e("s_movk_i32 s20, 3456")
    e("v_mul_lo_u32 v5, v5, s20")
    e("v_and_b32 v6, 15, v0")
    e("v_lshlrev_b32 v6, 1, v6")
    e("v_add_u32 v5, v5, v6")
    e("v_add_u32 v5, s21, v5")
    e("buffer_store_short v13, v5, s[56:59], 0 offen")
    e("K3_END:")
    e("s_endpgm")
    kernel_desc(name, 136)

K4_RED = 9 * 6144
K4_LDS = K4_RED + 9 * 1024

def k4():
    name = "down_kernel"
    kernel_header(name)
    e("s_cmp_ge_u32 s2, 40")
    e("s_cbranch_scc1 K4_END")
    e("s_load_dwordx2 s[4:5], s[0:1], 80")
    e("s_load_dwordx2 s[8:9], s[0:1], 88")
    e("s_load_dwordx2 s[14:15], s[0:1], 104")
    e("s_waitcnt lgkmcnt(0)")
    srd(40, 4, D_ * F_ * 2)
    srd(44, 8, TB)
    srd(48, 14, TB, WS_HN)
    srd(52, 14, TB, WS_H)
    srd(56, 14, 8 * F_ * 2, WS_GU)
    srd(60, 14, 32, WS_TOP)
    e("v_and_b32 v1, 63, v0")
    e("v_lshrrev_b32 v2, 6, v0")
    e("s_nop 0")
    e("v_readfirstlane_b32 s18, v2")
    e("s_nop 3")
    e("s_mul_i32 s19, s18, 192")
    e("v_lshrrev_b32 v4, 1, v1")
    e("v_add_u32 v4, s19, v4")
    e("s_movk_i32 s20, 1280")
    e("v_mul_lo_u32 v4, v4, s20")
    e("v_and_b32 v5, 1, v1")
    e("v_lshlrev_b32 v5, 4, v5")
    e("v_add_u32 v4, v4, v5")
    e("s_lshl_b32 s21, s2, 5")
    e("v_add_u32 v4, s21, v4")
    for i in range(6):
        e(f"s_mov_b32 s22, {32*1280*i}")
        e(f"buffer_load_dwordx4 v[{64+4*i}:{67+4*i}], v4, s[40:43], s22 offen")
    e("v_and_b32 v21, 7, v1")
    e("s_movk_i32 s20, 3456")
    e("v_mul_lo_u32 v22, v21, s20")
    e("v_lshrrev_b32 v3, 4, v1")
    e("v_lshlrev_b32 v23, 4, v3")
    e("v_add_u32 v22, v22, v23")
    e("s_mul_i32 s19, s18, 384")
    e("v_add_u32 v22, s19, v22")
    for ks in range(6):
        e(f"buffer_load_dwordx4 v[{104+4*ks}:{107+4*ks}], v22, s[56:59], 0 offen offset:{64*ks}")
    e("s_mul_i32 s24, s18, 6144")
    e("v_lshlrev_b32 v4, 4, v1")
    e("v_add_u32 v4, s24, v4")
    e("s_waitcnt vmcnt(6)")
    for i in range(6):
        e(f"ds_write_b128 v4, v[{64+4*i}:{67+4*i}] offset:{1024*i}")
    e("v_and_b32 v2, 15, v1")
    e("v_lshlrev_b32 v5, 8, v3")
    e("v_lshlrev_b32 v6, 1, v2")
    e("v_add_u32 v5, v5, v6")
    e("v_add_u32 v5, s24, v5")
    for i in range(4):
        e(f"v_mov_b32 v{128+i}, 0")
    e("s_waitcnt lgkmcnt(0)")
    for ks in range(6):
        for i in range(8):
            off = (32 * ks + i) * 32
            e(f"ds_read_u16 v{32+i}, v5 offset:{off}")
        e("s_waitcnt vmcnt(0) lgkmcnt(0)")
        for i in range(4):
            e(f"v_lshl_or_b32 v{24+i}, v{32+2*i+1}, 16, v{32+2*i}")
        e("s_nop 1")
        e(f"v_mfma_f32_16x16x32_bf16 v[128:131], v[{104+4*ks}:{107+4*ks}], v[24:27], v[128:131]")
        e("s_nop 7")
    e("s_nop 7")
    e("s_lshl_b32 s25, s18, 10")
    e("v_lshlrev_b32 v4, 8, v3")
    e("v_lshlrev_b32 v6, 2, v2")
    e("v_add_u32 v4, v4, v6")
    e("v_add_u32 v4, s25, v4")
    for i in range(4):
        e(f"ds_write_b32 v4, v{128+i} offset:{K4_RED+64*i}")
    e("s_waitcnt lgkmcnt(0)")
    e("s_barrier")
    e("s_cmp_ge_u32 s18, 2")
    e("s_cbranch_scc1 K4_END")
    e("v_lshrrev_b32 v5, 4, v0")
    e("v_lshlrev_b32 v6, 2, v5")
    e("buffer_load_dword v20, v6, s[60:63], 0 offen")
    e("v_lshlrev_b32 v4, 2, v0")
    for w in range(9):
        e(f"ds_read_b32 v{8+w}, v4 offset:{K4_RED+1024*w}")
    e("s_waitcnt vmcnt(0)")
    e("v_and_b32 v21, 2047, v20")
    e("v_sub_u32 v21, 2047, v21")
    e("s_movk_i32 s20, 1280")
    e("v_mul_lo_u32 v21, v21, s20")
    e("v_and_b32 v6, 15, v0")
    e("v_lshlrev_b32 v6, 1, v6")
    e("v_add_u32 v21, v21, v6")
    e("v_add_u32 v21, s21, v21")
    e("buffer_load_ushort v22, v21, s[52:55], 0 offen")
    e("buffer_load_ushort v23, v21, s[48:51], 0 offen")
    e("v_lshrrev_b32 v24, 11, v20")
    e("v_and_b32 v25, 0x7fff, v24")
    e("v_xor_b32 v26, 0xffff, v24")
    e("v_cmp_lt_u32 vcc, 0x7fff, v24")
    e("s_nop 1")
    e("v_cndmask_b32 v24, v26, v25, vcc")
    e("v_lshlrev_b32 v24, 16, v24")
    e("v_mul_f32 v25, 0xbfb8aa3b, v24")
    e("v_exp_f32 v25, v25")
    e("s_nop 0")
    e("v_add_f32 v25, 1.0, v25")
    e("v_rcp_f32 v26, v25")
    e("s_nop 0")
    e("v_fma_f32 v27, -v26, v25, 1.0")
    e("v_fma_f32 v26, v27, v26, v26")
    e("v_cvt_pk_bf16_f32 v27, v26, v26")
    e("v_lshlrev_b32 v26, 16, v27")
    e("s_waitcnt lgkmcnt(0)")
    for w in range(1, 9):
        e(f"v_add_f32 v8, v8, v{8+w}")
    e("v_cvt_pk_bf16_f32 v9, v8, v8")
    e("v_lshlrev_b32 v8, 16, v9")
    e("v_mul_f32 v8, v8, v26")
    e("v_cvt_pk_bf16_f32 v9, v8, v8")
    e("v_lshlrev_b32 v8, 16, v9")
    e("s_waitcnt vmcnt(0)")
    e("v_lshlrev_b32 v22, 16, v22")
    e("v_lshlrev_b32 v23, 16, v23")
    e("v_add_f32 v8, v8, v23")
    e("v_cvt_pk_bf16_f32 v9, v8, v8")
    e("v_lshlrev_b32 v8, 16, v9")
    e("v_add_f32 v8, v8, v22")
    e("v_cvt_pk_bf16_f32 v9, v8, v8")
    e("buffer_store_short v9, v21, s[44:47], 0 offen")
    e("K4_END:")
    e("s_endpgm")
    kernel_desc(name, 136)

def main():
    hdr = open(OUT0 + ".ref").read().split("; Override launch geometry")[0]
    e(hdr.rstrip("\n"))
    e(f"; @launch kernel=conv_kernel grid=(160,1,1) block=(256,1,1) lds={K1_LDS}")
    e(f"; @launch kernel=rows_kernel grid=(512,1,1) block=(256,1,1) lds=0")
    e(f"; @launch kernel=gateup_kernel grid=(108,1,1) block=(256,1,1) lds={K3_LDS}")
    e(f"; @launch kernel=down_kernel grid=(40,1,1) block=(576,1,1) lds={K4_LDS}")
    e('.amdgcn_target "amdgcn-amd-amdhsa--gfx950"')
    e(".text")
    k1(); k2(); k3(); k4()
    e('.section .rodata,"a"')
    for k in KD:
        e(k)
    open(OUT, "w").write("\n".join(L) + "\n")

main()
```

```python
import sys, os
EXP = os.environ.get("EXP", "")

NAME = "sequential_preLN__ssm_conv_h3__moe_arch_mod__prompt"
OUT0 = "cdna_kernels/%s.s" % NAME
OUT = os.environ.get("OUT", OUT0)

L = []
def e(s=""):
    L.append(s)

S_, D_, F_ = 2048, 640, 1728
ROWB = D_ * 2
TB = S_ * ROWB
WS_Z = 0
WS_H = TB
WS_HN = 2 * TB
WS_RK = 3 * TB
WS_GU = WS_RK + 8192
WS_TOP = WS_GU + 32768
WS_KVT = WS_TOP + 4096
WS_SIZE = 268435456

def srd(sd, sb, nbytes, add=0):
    if add:
        e(f"s_add_u32 s{sd}, s{sb}, {add}")
        e(f"s_addc_u32 s{sd+1}, s{sb+1}, 0")
    else:
        e(f"s_mov_b32 s{sd}, s{sb}")
        e(f"s_mov_b32 s{sd+1}, s{sb+1}")
    e(f"s_mov_b32 s{sd+2}, {nbytes}")
    e(f"s_mov_b32 s{sd+3}, 0x00020000")

def kernel_header(name):
    e(f".globl {name}")
    e(".p2align 8")
    e(f".type {name},@function")
    e(f"{name}:")

KD = []
def kernel_desc(name, vgpr, sgpr=102):
    acc = (vgpr + 3) // 4 * 4
    KD.append(f""".p2align 6
.amdhsa_kernel {name}
  .amdhsa_next_free_vgpr {vgpr}
  .amdhsa_next_free_sgpr {sgpr}
  .amdhsa_accum_offset {acc}
  .amdhsa_group_segment_fixed_size 0
  .amdhsa_kernarg_size 112
  .amdhsa_user_sgpr_count 2
  .amdhsa_user_sgpr_kernarg_segment_ptr 1
  .amdhsa_system_sgpr_workgroup_id_x 1
.end_amdhsa_kernel""")

def round_list(regs, tmp):
    n = len(regs)
    assert n % 2 == 0
    for i in range(0, n, 2):
        e(f"v_cvt_pk_bf16_f32 v{tmp[i//2]}, v{regs[i]}, v{regs[i+1]}")
    for i in range(0, n, 2):
        e(f"v_lshlrev_b32 v{regs[i]}, 16, v{tmp[i//2]}")
        e(f"v_and_b32 v{regs[i+1]}, 0xffff0000, v{tmp[i//2]}")

def wave_reduce(op, v, vt, sdst):
    e("s_nop 1")
    e(f"{op}_dpp v{v}, v{v}, v{v} quad_perm:[1,0,3,2] row_mask:0xf bank_mask:0xf")
    e("s_nop 1")
    e(f"{op}_dpp v{v}, v{v}, v{v} quad_perm:[2,3,0,1] row_mask:0xf bank_mask:0xf")
    e("s_nop 1")
    e(f"{op}_dpp v{v}, v{v}, v{v} row_half_mirror row_mask:0xf bank_mask:0xf")
    e("s_nop 1")
    e(f"{op}_dpp v{v}, v{v}, v{v} row_mirror row_mask:0xf bank_mask:0xf")
    e("s_nop 1")
    e(f"{op}_dpp v{v}, v{v}, v{v} row_bcast:15 row_mask:0xa bank_mask:0xf")
    e("s_nop 1")
    e(f"{op}_dpp v{v}, v{v}, v{v} row_bcast:31 row_mask:0xc bank_mask:0xf")
    e("s_nop 1")
    e(f"v_readlane_b32 s{sdst}, v{v}, 63")
    e("s_nop 3")

K0_RS = 144
K0_LDS = 64 * K0_RS

def k0():
    name = "kvt_kernel"
    kernel_header(name)
    e("s_cmp_ge_u32 s2, 320")
    e("s_cbranch_scc1 K0_END")
    e("s_load_dwordx4 s[4:7], s[0:1], 8")
    e("s_load_dwordx2 s[8:9], s[0:1], 24")
    e("s_load_dwordx2 s[14:15], s[0:1], 104")
    e("s_mul_hi_u32 s16, s2, 0x1999999a")
    e("s_mul_i32 s17, s16, 10")
    e("s_sub_u32 s17, s2, s17")
    e("v_and_b32 v1, 7, v0")
    e("v_lshrrev_b32 v2, 3, v0")
    e("s_waitcnt lgkmcnt(0)")
    srd(40, 4, TB)
    srd(44, 6, TB)
    srd(48, 8, D_ * 8)
    srd(52, 14, TB, WS_KVT)
    e("s_lshl_b32 s18, s17, 9")
    e("v_lshlrev_b32 v3, 6, v1")
    e("v_add_u32 v3, s18, v3")
    for i in range(4):
        e(f"buffer_load_dwordx4 v[{8+4*i}:{11+4*i}], v3, s[48:51], 0 offen offset:{16*i}")
    e("s_lshl_b32 s19, s16, 6")
    e("v_lshlrev_b32 v4, 1, v2")
    e("v_add_u32 v4, s19, v4")
    e("s_movk_i32 s20, 1280")
    e("v_mul_lo_u32 v4, v4, s20")
    e("s_lshl_b32 s21, s17, 7")
    e("v_lshlrev_b32 v5, 4, v1")
    e("v_add_u32 v4, v4, v5")
    e("v_add_u32 v4, s21, v4")
    e("v_subrev_u32 v5, 3840, v4")
    KR = 24
    VR = 44
    for r in range(3):
        e(f"buffer_load_dwordx4 v[{KR+4*r}:{KR+4*r+3}], v5, s[40:43], 0 offen offset:{1280*r}")
    for r in range(2):
        e(f"buffer_load_dwordx4 v[{KR+12+4*r}:{KR+12+4*r+3}], v4, s[40:43], 0 offen offset:{1280*r}")
    for r in range(2):
        e(f"buffer_load_dwordx4 v[{VR+4*r}:{VR+4*r+3}], v4, s[44:47], 0 offen offset:{1280*r}")
    e(f"s_movk_i32 s22, {8*K0_RS}")
    e("v_mul_lo_u32 v6, v1, s22")
    e("v_lshlrev_b32 v7, 2, v2")
    e("v_sub_u32 v7, 124, v7")
    e("v_add_u32 v6, v6, v7")
    e("s_waitcnt vmcnt(0)")
    KF = list(range(64, 74))
    WF = list(range(74, 82))
    T = list(range(82, 86))
    U = list(range(86, 90))
    TMP = [90, 91]
    for p in range(4):
        for r in range(5):
            e(f"v_lshlrev_b32 v{KF[r]}, 16, v{KR+4*r+p}")
            e(f"v_and_b32 v{KF[5+r]}, 0xffff0000, v{KR+4*r+p}")
        for h in range(2):
            c = 2 * p + h
            e(f"v_lshlrev_b32 v{WF[4*h+0]}, 16, v{8+2*c}")
            e(f"v_and_b32 v{WF[4*h+1]}, 0xffff0000, v{8+2*c}")
            e(f"v_lshlrev_b32 v{WF[4*h+2]}, 16, v{8+2*c+1}")
            e(f"v_and_b32 v{WF[4*h+3]}, 0xffff0000, v{8+2*c+1}")
        for h in range(2):
            for r in range(2):
                e(f"v_mul_f32 v{T[2*h+r]}, v{WF[4*h+3]}, v{KF[5*h+r]}")
        round_list(T, TMP)
        for j in (2, 1, 0):
            for h in range(2):
                for r in range(2):
                    e(f"v_mul_f32 v{U[2*h+r]}, v{WF[4*h+j]}, v{KF[5*h+r+3-j]}")
            round_list(U, TMP)
            for q in range(4):
                e(f"v_add_f32 v{T[q]}, v{T[q]}, v{U[q]}")
            round_list(T, TMP)
        for r in range(2):
            e(f"v_lshlrev_b32 v{U[r]}, 16, v{VR+4*r+p}")
            e(f"v_and_b32 v{U[2+r]}, 0xffff0000, v{VR+4*r+p}")
        for q in range(4):
            e(f"v_mul_f32 v{T[q]}, v{T[q]}, v{U[q]}")
        for h in range(2):
            e(f"v_cvt_pk_bf16_f32 v{TMP[h]}, v{T[2*h+1]}, v{T[2*h]}")
            e(f"ds_write_b32 v6, v{TMP[h]} offset:{(2*p+h)*K0_RS}")
    e("s_waitcnt lgkmcnt(0)")
    e("s_barrier")
    e(f"s_movk_i32 s22, {K0_RS}")
    e("v_mul_lo_u32 v6, v2, s22")
    e("v_lshlrev_b32 v7, 4, v1")
    e("v_add_u32 v6, v6, v7")
    e("ds_read_b128 v[8:11], v6")
    e(f"ds_read_b128 v[12:15], v6 offset:{32*K0_RS}")
    e("s_lshl_b32 s18, s17, 18")
    e("s_lshl_b32 s19, s16, 7")
    e("s_sub_u32 s19, 3968, s19")
    e("s_add_u32 s18, s18, s19")
    e("v_lshlrev_b32 v4, 12, v2")
    e("v_add_u32 v4, v4, v7")
    e("v_add_u32 v4, s18, v4")
    e("s_mov_b32 s23, 0x20000")
    e("s_waitcnt lgkmcnt(0)")
    e("buffer_store_dwordx4 v[8:11], v4, s[52:55], 0 offen")
    e("buffer_store_dwordx4 v[12:15], v4, s[52:55], s23 offen")
    e("K0_END:")
    e("s_endpgm")
    kernel_desc(name, 96)

KE = 0
KO = 4164
XR = 8288
K1_LDS = 12864

def k1():
    name = "conv_kernel"
    kernel_header(name)
    e("s_cmp_ge_u32 s2, 640")
    e("s_cbranch_scc1 K1_END")
    e("s_load_dwordx2 s[10:11], s[0:1], 32")
    e("s_load_dwordx2 s[12:13], s[0:1], 40")
    e("s_load_dwordx2 s[14:15], s[0:1], 104")
    e("v_and_b32 v1, 63, v0")
    e("v_lshrrev_b32 v2, 6, v0")
    e("s_lshl_b32 s19, s2, 12")
    e("v_lshlrev_b32 v3, 4, v0")
    e("v_add_u32 v3, s19, v3")
    e("v_subrev_u32 v4, 4, v3")
    e("v_readfirstlane_b32 s18, v2")
    e("s_waitcnt lgkmcnt(0)")
    e("s_and_b32 s17, s2, 0xfffffffe")
    e("s_lshl_b32 s17, s17, 1")
    e("s_add_u32 s12, s12, s17")
    e("s_addc_u32 s13, s13, 0")
    e("s_load_dword s32, s[12:13], 0")
    srd(48, 10, D_ * S_ * 2)
    srd(44, 14, TB, WS_KVT)
    srd(52, 14, TB, WS_Z)
    for r in range(2):
        e(f"buffer_load_dwordx4 v[{20+4*r}:{23+4*r}], v3, s[48:51], 0 offen offset:{2048*r}")
    for r in range(2):
        e(f"buffer_load_dword v{28+r}, v4, s[48:51], 0 offen offset:{2048*r}")
    for r in range(2):
        e(f"buffer_load_dwordx4 v[{32+4*r}:{35+4*r}], v3, s[44:47], 0 offen offset:{2048*r}")
    e("v_mov_b32 v8, 0")
    e("v_mov_b32 v9, 0")
    e("v_mov_b32 v10, 0")
    e("v_mov_b32 v11, 0")
    e("v_lshlrev_b32 v12, 4, v0")
    e("v_cmp_gt_u32 vcc, 30, v0")
    e("s_and_saveexec_b64 s[38:39], vcc")
    e(f"ds_write_b128 v12, v[8:11] offset:{XR+4096}")
    e("s_mov_b64 exec, s[38:39]")
    e("v_lshlrev_b32 v13, 2, v0")
    e("v_cmp_gt_u32 vcc, 8, v0")
    e("s_and_saveexec_b64 s[38:39], vcc")
    e(f"ds_write_b32 v13, v8 offset:{KE}")
    e("s_mov_b64 exec, s[38:39]")
    e("v_cmp_gt_u32 vcc, 7, v0")
    e("s_and_saveexec_b64 s[38:39], vcc")
    e(f"ds_write_b32 v13, v8 offset:{KO}")
    e("s_mov_b64 exec, s[38:39]")
    e("v_and_b32 v2, 15, v1")
    e("v_lshrrev_b32 v3, 4, v1")
    e("v_lshlrev_b32 v4, 3, v3")
    e("v_add_u32 v4, v4, v2")
    e("v_lshlrev_b32 v4, 1, v4")
    e("v_and_b32 v5, 1, v2")
    e("v_cmp_eq_u32 vcc, 1, v5")
    e(f"v_mov_b32 v6, {KO}")
    e(f"v_mov_b32 v7, {KE+2}")
    e("v_cndmask_b32 v5, v6, v7, vcc")
    e("s_lshl_b32 s20, s18, 8")
    e("v_add_u32 v40, v4, v5")
    e("v_add_u32 v40, s20, v40")
    e("v_add_u32 v41, 1024, v40")
    e("v_add_u32 v42, 2048, v40")
    e("v_add_u32 v43, 3072, v40")
    e("v_lshlrev_b32 v44, 5, v2")
    e("v_lshlrev_b32 v13, 4, v3")
    e(f"v_sub_u32 v44, {XR+480}, v44")
    e("v_add_u32 v44, v44, v13")
    e("v_add_u32 v44, s20, v44")
    ACC = 128
    for i in range(32):
        e(f"v_mov_b32 v{ACC+i}, 0")
    e("s_waitcnt vmcnt(2)")
    e("v_cmp_eq_u32 vcc, 0, v0")
    e("s_nop 1")
    e("v_cndmask_b32 v28, v28, v8, vcc")
    for r in range(2):
        b = 20 + 4 * r
        e(f"ds_write_b128 v12, v[{b}:{b+3}] offset:{KE+32+2048*r}")
        e(f"v_alignbit_b32 v16, v{b}, v{28+r}, 16")
        e(f"v_alignbit_b32 v17, v{b+1}, v{b}, 16")
        e(f"v_alignbit_b32 v18, v{b+2}, v{b+1}, 16")
        e(f"v_alignbit_b32 v19, v{b+3}, v{b+2}, 16")
        e(f"ds_write_b128 v12, v[16:19] offset:{KO+28+2048*r}")
        e("s_nop 1")
    e("s_waitcnt vmcnt(0)")
    for r in range(2):
        e(f"ds_write_b128 v12, v[{32+4*r}:{35+4*r}] offset:{XR+2048*r}")
    e("s_waitcnt lgkmcnt(0)")
    e("s_and_b32 s35, s2, 1")
    e("s_cmp_eq_u32 s35, 0")
    e("s_cbranch_scc1 K1_DLO")
    e("s_and_b32 s34, s32, 0xffff0000")
    e("s_branch K1_DDONE")
    e("K1_DLO:")
    e("s_lshl_b32 s34, s32, 16")
    e("K1_DDONE:")
    e("s_barrier")
    SETS = [(64, 96), (160, 192)]
    def reads(c0, st):
        A, B = SETS[st]
        out = []
        for t in range(8):
            ar = 40 + t // 2
            off = (64 * c0 + 512 * (t & 1)) // 4
            out.append(f"ds_read2_b32 v[{A+4*t}:{A+4*t+1}], v{ar} offset0:{off} offset1:{off+1}")
            out.append(f"ds_read2_b32 v[{A+4*t+2}:{A+4*t+3}], v{ar} offset0:{off+2} offset1:{off+3}")
        for wp in range(8):
            out.append(f"ds_read_b128 v[{B+4*wp}:{B+4*wp+3}], v44 offset:{64*c0+512*(7-wp)}")
        return out
    for x in reads(0, 0):
        e(x)
    NC = 4
    for c0 in range(NC):
        st = c0 & 1
        A, B = SETS[st]
        e("s_waitcnt lgkmcnt(0)")
        nxt = reads(c0 + 1, st ^ 1) if c0 < NC - 1 else []
        for j in range(8):
            for t in range(j + 1):
                a = A + 4 * t
                b = B + 4 * (j - t)
                d = ACC + 4 * j
                e(f"v_mfma_f32_16x16x32_bf16 v[{d}:{d+3}], v[{a}:{a+3}], v[{b}:{b+3}], v[{d}:{d+3}]")
                for _ in range(2):
                    if nxt:
                        e(nxt.pop(0))
    e("s_nop 15")
    e("s_barrier")
    e("v_lshlrev_b32 v5, 2, v1")
    e("s_xor_b32 s21, s18, 1")
    e("s_lshl_b32 s21, s21, 12")
    e("v_add_u32 v6, s21, v5")
    e("s_lshl_b32 s22, s18, 12")
    e("v_add_u32 v7, s22, v5")
    e("s_cmp_eq_u32 s18, 0")
    e("s_cbranch_scc1 K1_W0")
    for q in range(16):
        e(f"ds_write_b32 v6, v{ACC+q} offset:{256*q}")
    for q in range(16):
        e(f"v_mov_b32 v{ACC+q}, v{ACC+16+q}")
    e("s_branch K1_XDONE")
    e("K1_W0:")
    for q in range(16):
        e(f"ds_write_b32 v6, v{ACC+16+q} offset:{256*q}")
    e("K1_XDONE:")
    e("s_waitcnt lgkmcnt(0)")
    e("s_barrier")
    for q in range(16):
        e(f"ds_read_b32 v{64+q}, v7 offset:{256*q}")
    e("v_lshlrev_b32 v4, 5, v2")
    e("v_lshlrev_b32 v5, 3, v3")
    e("v_add_u32 v4, v4, v5")
    e("s_lshl_b32 s23, s18, 11")
    e(f"v_sub_u32 v8, {XR+4088-1536}, v4")
    e("v_subrev_u32 v8, s23, v8")
    for j4 in range(4):
        e(f"ds_read_b64 v[{80+2*j4}:{81+2*j4}], v8 offset:{512*(3-j4)}")
    e("v_add_u32 v9, s19, v4")
    e("v_add_u32 v9, s23, v9")
    e("s_waitcnt lgkmcnt(0)")
    for j4 in range(4):
        a = ACC + 4 * j4
        Y = [a, a + 1, a + 2, a + 3]
        for i in range(4):
            e(f"v_add_f32 v{Y[i]}, v{Y[i]}, v{64+4*j4+i}")
        round_list(Y, [20, 21])
        e(f"v_and_b32 v24, 0xffff0000, v{81+2*j4}")
        e(f"v_lshlrev_b32 v25, 16, v{81+2*j4}")
        e(f"v_and_b32 v26, 0xffff0000, v{80+2*j4}")
        e(f"v_lshlrev_b32 v27, 16, v{80+2*j4}")
        for i in range(4):
            e(f"v_mul_f32 v{24+i}, s34, v{24+i}")
        round_list([24, 25, 26, 27], [20, 21])
        for i in range(4):
            e(f"v_add_f32 v{24+i}, v{24+i}, v{Y[i]}")
        e(f"v_cvt_pk_bf16_f32 v{96+2*j4}, v24, v25")
        e(f"v_cvt_pk_bf16_f32 v{97+2*j4}, v26, v27")
        e(f"buffer_store_dwordx2 v[{96+2*j4}:{97+2*j4}], v9, s[52:55], 0 offen offset:{512*j4}")
    e("K1_END:")
    e("s_endpgm")
    kernel_desc(name, 224)

def unpack10(src4, src1, dst):
    for i in range(4):
        e(f"v_lshlrev_b32 v{dst[2*i]}, 16, v{src4+i}")
        e(f"v_and_b32 v{dst[2*i+1]}, 0xffff0000, v{src4+i}")
    e(f"v_lshlrev_b32 v{dst[8]}, 16, v{src1}")
    e(f"v_and_b32 v{dst[9]}, 0xffff0000, v{src1}")

def layernorm(X, OUTR, TMP, sc):
    e(f"v_add_f32 v60, v{X[0]}, v{X[1]}")
    for i in range(2, 10):
        e(f"v_add_f32 v60, v60, v{X[i]}")
    wave_reduce("v_add_f32", 60, None, sc)
    e(f"v_mov_b32 v61, 0x3acccccd")
    e(f"v_mul_f32 v61, s{sc}, v61")
    e(f"v_sub_f32 v62, v{X[0]}, v61")
    e("v_mul_f32 v60, v62, v62")
    for i in range(1, 10):
        e(f"v_sub_f32 v62, v{X[i]}, v61")
        e("v_fmac_f32 v60, v62, v62")
    wave_reduce("v_add_f32", 60, None, sc + 1)
    e(f"v_mov_b32 v62, 0x3acccccd")
    e(f"v_mul_f32 v62, s{sc+1}, v62")
    e("v_cvt_pk_bf16_f32 v63, v61, v62")
    e("v_lshlrev_b32 v61, 16, v63")
    e("v_and_b32 v62, 0xffff0000, v63")
    e("v_add_f32 v62, 0x3727c5ac, v62")
    e("v_cvt_pk_bf16_f32 v63, v62, v62")
    e("v_lshlrev_b32 v62, 16, v63")
    e("v_sqrt_f32 v62, v62")
    e("s_nop 0")
    e("v_cvt_pk_bf16_f32 v63, v62, v62")
    e("v_lshlrev_b32 v62, 16, v63")
    e("v_rcp_f32 v63, v62")
    e("s_nop 0")
    for i in range(10):
        e(f"v_sub_f32 v{OUTR[i]}, v{X[i]}, v61")
    round_list(OUTR, TMP)
    for i in range(10):
        e(f"v_mul_f32 v60, v{OUTR[i]}, v63")
        e(f"v_fma_f32 v{OUTR[i]}, -v60, v62, v{OUTR[i]}")
        e(f"v_fma_f32 v{OUTR[i]}, v{OUTR[i]}, v63, v60")
    round_list(OUTR, TMP)

def pack_store(R, P, voff4, voff1, srdr):
    for i in range(5):
        e(f"v_cvt_pk_bf16_f32 v{P+i}, v{R[2*i]}, v{R[2*i+1]}")
    e(f"buffer_store_dwordx4 v[{P}:{P+3}], v{voff4}, s[{srdr}:{srdr+3}], 0 offen")
    e(f"buffer_store_dword v{P+4}, v{voff1}, s[{srdr}:{srdr+3}], 0 offen")

K2_LDS = 8 * 1280

def k2():
    name = "rows_kernel"
    kernel_header(name)
    e("s_cmp_ge_u32 s2, 256")
    e("s_cbranch_scc1 K2_END")
    e("s_load_dwordx2 s[4:5], s[0:1], 0")
    e("s_load_dwordx2 s[6:7], s[0:1], 56")
    e("s_load_dwordx2 s[8:9], s[0:1], 88")
    e("s_load_dwordx2 s[14:15], s[0:1], 104")
    e("s_and_b32 s16, s2, 7")
    e("s_lshl_b32 s16, s16, 5")
    e("s_lshr_b32 s17, s2, 3")
    e("s_add_u32 s16, s16, s17")
    e("v_and_b32 v1, 63, v0")
    e("v_lshrrev_b32 v2, 6, v0")
    e("s_lshl_b32 s18, s16, 3")
    e("v_add_u32 v2, s18, v2")
    e("s_movk_i32 s17, 1280")
    e("v_mul_lo_u32 v3, v2, s17")
    e("v_lshlrev_b32 v4, 4, v1")
    e("v_lshlrev_b32 v5, 2, v1")
    e("v_add_u32 v5, 1024, v5")
    e("v_add_u32 v6, v3, v4")
    e("v_add_u32 v7, v3, v5")
    e("v_lshlrev_b32 v30, 12, v0")
    e("s_lshl_b32 s19, s16, 4")
    e("v_add_u32 v30, s19, v30")
    e("s_waitcnt lgkmcnt(0)")
    srd(40, 4, TB)
    srd(44, 6, ROWB)
    srd(48, 8, TB)
    srd(52, 14, TB, WS_Z)
    srd(56, 14, TB, WS_H)
    srd(60, 14, TB, WS_HN)
    srd(64, 14, 8192, WS_RK)
    e("s_mov_b32 s20, 0x200000")
    e("buffer_load_dwordx4 v[32:35], v30, s[52:55], 0 offen")
    e("buffer_load_dwordx4 v[36:39], v30, s[52:55], s20 offen")
    e("buffer_load_dwordx4 v[8:11], v6, s[40:43], 0 offen")
    e("buffer_load_dword v12, v7, s[40:43], 0 offen")
    e("buffer_load_dwordx4 v[24:27], v4, s[44:47], 0 offen")
    e("buffer_load_dword v28, v5, s[44:47], 0 offen")
    e("v_lshlrev_b32 v31, 1, v0")
    e("s_waitcnt vmcnt(4)")
    for r in range(8):
        d16 = "_d16_hi" if r & 1 else ""
        e(f"ds_write_b16{d16} v31, v{32+r//2} offset:{1280*r}")
    e("v_cmp_gt_u32 vcc, 128, v0")
    e("s_and_saveexec_b64 s[30:31], vcc")
    for r in range(8):
        d16 = "_d16_hi" if r & 1 else ""
        e(f"ds_write_b16{d16} v31, v{36+r//2} offset:{1280*r+1024}")
    e("s_mov_b64 exec, s[30:31]")
    X = list(range(64, 74))
    QN = list(range(74, 84))
    Z = list(range(84, 94))
    H = list(range(94, 104))
    TMP = list(range(104, 109))
    e("s_waitcnt vmcnt(2)")
    unpack10(8, 12, X)
    e("s_waitcnt lgkmcnt(0)")
    e("s_barrier")
    e("v_lshrrev_b32 v29, 6, v0")
    e("v_mul_lo_u32 v29, v29, s17")
    e("v_add_u32 v31, v29, v4")
    e("v_add_u32 v29, v29, v5")
    e("ds_read_b128 v[16:19], v31")
    e("ds_read_b32 v20, v29")
    layernorm(X, QN, TMP, 20)
    e("s_waitcnt lgkmcnt(0)")
    unpack10(16, 20, Z)
    for i in range(10):
        e(f"v_mul_f32 v{QN[i]}, v{QN[i]}, v{Z[i]}")
    round_list(QN, TMP)
    for i in range(10):
        e(f"v_add_f32 v{H[i]}, v{X[i]}, v{QN[i]}")
    round_list(H, TMP)
    pack_store(H, 112, 6, 7, 56)
    HN = QN
    layernorm(H, HN, TMP, 22)
    pack_store(HN, 120, 6, 7, 60)
    e("s_waitcnt vmcnt(4)")
    W = Z
    unpack10(24, 28, W)
    e(f"v_mul_f32 v60, v{HN[0]}, v{W[0]}")
    for i in range(1, 10):
        e(f"v_fmac_f32 v60, v{HN[i]}, v{W[i]}")
    wave_reduce("v_add_f32", 60, None, 24)
    for i in range(10):
        e(f"v_add_f32 v{X[i]}, v{H[i]}, v{HN[i]}")
    pack_store(X, 128, 6, 7, 48)
    e("v_mov_b32 v60, s24")
    e("v_cvt_pk_bf16_f32 v61, v60, v60")
    e("v_and_b32 v61, 0xffff, v61")
    e("v_xor_b32 v62, 0xffff, v61")
    e("v_or_b32 v63, 0x8000, v61")
    e("v_cmp_gt_u32 vcc, 0x8000, v61")
    e("s_nop 1")
    e("v_cndmask_b32 v61, v62, v63, vcc")
    e("v_lshlrev_b32 v61, 11, v61")
    e("v_sub_u32 v62, 2047, v2")
    e("v_or_b32 v61, v61, v62")
    e("v_lshlrev_b32 v62, 2, v2")
    e("v_cmp_eq_u32 vcc, 0, v1")
    e("s_and_saveexec_b64 s[30:31], vcc")
    e("buffer_store_dword v61, v62, s[64:67], 0 offen")
    e("K2_END:")
    e("s_endpgm")
    kernel_desc(name, 136)

K3_WL = 0
K3_CAND = 40960
K3_TOP = 40960 + 128
K3_RED = 41216
K3_LDS = K3_RED + 8192

def k3():
    name = "gateup_kernel"
    kernel_header(name)
    e("s_cmp_ge_u32 s2, 108")
    e("s_cbranch_scc1 K3_END")
    e("s_load_dwordx4 s[4:7], s[0:1], 64")
    e("s_load_dwordx2 s[14:15], s[0:1], 104")
    e("s_waitcnt lgkmcnt(0)")
    srd(40, 4, D_ * F_ * 2)
    srd(44, 6, D_ * F_ * 2)
    srd(48, 14, TB, WS_HN)
    srd(52, 14, 8192, WS_RK)
    srd(56, 14, 8 * F_ * 2, WS_GU)
    srd(60, 14, 32, WS_TOP)
    e("v_and_b32 v1, 63, v0")
    e("v_lshrrev_b32 v2, 6, v0")
    e("s_nop 0")
    e("v_readfirstlane_b32 s18, v2")
    e("v_lshlrev_b32 v3, 5, v0")
    e("buffer_load_dwordx4 v[8:11], v3, s[52:55], 0 offen")
    e("buffer_load_dwordx4 v[12:15], v3, s[52:55], 0 offen offset:16")
    e("s_mul_i32 s19, s18, 160")
    e("v_lshrrev_b32 v4, 1, v1")
    e("v_add_u32 v4, s19, v4")
    e("s_movk_i32 s20, 3456")
    e("v_mul_lo_u32 v4, v4, s20")
    e("v_and_b32 v5, 1, v1")
    e("v_lshlrev_b32 v5, 4, v5")
    e("v_add_u32 v4, v4, v5")
    e("s_lshl_b32 s21, s2, 5")
    e("v_add_u32 v4, s21, v4")
    for i in range(5):
        e(f"s_mov_b32 s22, {32*3456*i}")
        e(f"buffer_load_dwordx4 v[{64+4*i}:{67+4*i}], v4, s[40:43], s22 offen")
        e(f"buffer_load_dwordx4 v[{84+4*i}:{87+4*i}], v4, s[44:47], s22 offen")
    e("s_waitcnt vmcnt(10)")
    K = list(range(8, 16))
    e("v_mov_b32 v20, 0")
    for rnd in range(8):
        e(f"v_max3_u32 v16, v{K[0]}, v{K[1]}, v{K[2]}")
        e(f"v_max3_u32 v17, v{K[3]}, v{K[4]}, v{K[5]}")
        e(f"v_max3_u32 v16, v16, v{K[6]}, v{K[7]}")
        e("v_max_u32 v16, v16, v17")
        wave_reduce("v_max_u32", 16, None, 24)
        e(f"v_writelane_b32 v20, s24, {rnd}")
        if rnd < 7:
            for k in K:
                e(f"v_cmp_ne_u32 vcc, s24, v{k}")
                e("s_nop 1")
                e(f"v_cndmask_b32 v{k}, 0, v{k}, vcc")
    e("s_lshl_b32 s23, s18, 5")
    e("v_lshlrev_b32 v21, 2, v1")
    e("v_add_u32 v21, s23, v21")
    e("v_cmp_gt_u32 vcc, 8, v1")
    e("s_and_saveexec_b64 s[30:31], vcc")
    e(f"ds_write_b32 v21, v20 offset:{K3_CAND}")
    e("s_mov_b64 exec, s[30:31]")
    e("s_waitcnt lgkmcnt(0)")
    e("s_barrier")
    e("v_and_b32 v21, 31, v1")
    e("v_lshlrev_b32 v21, 2, v21")
    e(f"ds_read_b32 v22, v21 offset:{K3_CAND}")
    e("v_mov_b32 v23, 0")
    for i in range(8):
        e(f"ds_read_b128 v[{24+4*i}:{27+4*i}], v23 offset:{K3_CAND+16*i}")
    e("s_waitcnt lgkmcnt(0)")
    e("v_mov_b32 v21, 0")
    for i in range(32):
        e(f"v_cmp_gt_u32 vcc, v{24+i}, v22")
        e("s_nop 1")
        e("v_addc_co_u32 v21, vcc, 0, v21, vcc")
    e("v_lshlrev_b32 v23, 2, v21")
    e("v_cmp_gt_u32 vcc, 8, v21")
    e("s_and_saveexec_b64 s[30:31], vcc")
    e(f"ds_write_b32 v23, v22 offset:{K3_TOP}")
    e("s_mov_b64 exec, s[30:31]")
    e("s_waitcnt lgkmcnt(0)")
    e("s_barrier")
    e("v_and_b32 v21, 7, v1")
    e("v_lshlrev_b32 v21, 2, v21")
    e(f"ds_read_b32 v22, v21 offset:{K3_TOP}")
    e("s_waitcnt lgkmcnt(0)")
    e("s_cmp_lg_u32 s2, 0")
    e("s_cbranch_scc1 K3_NOTOP")
    e("s_cmp_lg_u32 s18, 0")
    e("s_cbranch_scc1 K3_NOTOP")
    e("v_cmp_gt_u32 vcc, 8, v1")
    e("s_and_saveexec_b64 s[30:31], vcc")
    e("buffer_store_dword v22, v21, s[60:63], 0 offen")
    e("s_mov_b64 exec, s[30:31]")
    e("K3_NOTOP:")
    e("v_and_b32 v22, 2047, v22")
    e("v_sub_u32 v22, 2047, v22")
    e("s_movk_i32 s20, 1280")
    e("v_mul_lo_u32 v22, v22, s20")
    e("v_lshrrev_b32 v3, 4, v1")
    e("v_lshlrev_b32 v23, 4, v3")
    e("v_add_u32 v22, v22, v23")
    e("s_mul_i32 s19, s18, 320")
    e("v_add_u32 v22, s19, v22")
    for ks in range(5):
        e(f"buffer_load_dwordx4 v[{104+4*ks}:{107+4*ks}], v22, s[48:51], 0 offen offset:{64*ks}")
    e("s_mul_i32 s24, s18, 10240")
    e("v_lshlrev_b32 v4, 4, v1")
    e("v_add_u32 v4, s24, v4")
    e("s_waitcnt vmcnt(5)")
    for i in range(5):
        e(f"ds_write_b128 v4, v[{64+4*i}:{67+4*i}] offset:{1024*i}")
        e(f"ds_write_b128 v4, v[{84+4*i}:{87+4*i}] offset:{5120+1024*i}")
    e("v_and_b32 v2, 15, v1")
    e("v_lshlrev_b32 v5, 8, v3")
    e("v_lshlrev_b32 v6, 1, v2")
    e("v_add_u32 v5, v5, v6")
    e("v_add_u32 v5, s24, v5")
    for i in range(8):
        e(f"v_mov_b32 v{124+i}, 0")
    e("s_waitcnt lgkmcnt(0)")
    for ks in range(5):
        for mat in range(2):
            bq = 24 + 4 * mat
            for i in range(8):
                off = mat * 5120 + (32 * ks + i) * 32
                e(f"ds_read_u16 v{32+8*mat+i}, v5 offset:{off}")
        e("s_waitcnt vmcnt(0) lgkmcnt(0)")
        for mat in range(2):
            for i in range(4):
                e(f"v_lshl_or_b32 v{24+4*mat+i}, v{32+8*mat+2*i+1}, 16, v{32+8*mat+2*i}")
        e("s_nop 1")
        e(f"v_mfma_f32_16x16x32_bf16 v[124:127], v[{104+4*ks}:{107+4*ks}], v[24:27], v[124:127]")
        e(f"v_mfma_f32_16x16x32_bf16 v[128:131], v[{104+4*ks}:{107+4*ks}], v[28:31], v[128:131]")
        e("s_nop 7")
    e("s_nop 7")
    e("s_lshl_b32 s25, s18, 11")
    e("v_lshlrev_b32 v4, 8, v3")
    e("v_lshlrev_b32 v6, 2, v2")
    e("v_add_u32 v4, v4, v6")
    e("v_add_u32 v4, s25, v4")
    for mat in range(2):
        for i in range(4):
            e(f"ds_write_b32 v4, v{124+4*mat+i} offset:{K3_RED+1024*mat+64*i}")
    e("s_waitcnt lgkmcnt(0)")
    e("s_barrier")
    e("s_cmp_ge_u32 s18, 2")
    e("s_cbranch_scc1 K3_END")
    e("v_lshlrev_b32 v4, 2, v0")
    for w in range(4):
        e(f"ds_read_b32 v{8+w}, v4 offset:{K3_RED+2048*w}")
        e(f"ds_read_b32 v{12+w}, v4 offset:{K3_RED+2048*w+1024}")
    e("s_waitcnt lgkmcnt(0)")
    e("v_add_f32 v8, v8, v9")
    e("v_add_f32 v10, v10, v11")
    e("v_add_f32 v8, v8, v10")
    e("v_add_f32 v12, v12, v13")
    e("v_add_f32 v14, v14, v15")
    e("v_add_f32 v9, v12, v14")
    round_list([8, 9], [10])
    e("v_mul_f32 v10, 0xbfb8aa3b, v8")
    e("v_exp_f32 v10, v10")
    e("s_nop 0")
    e("v_add_f32 v10, 1.0, v10")
    e("v_rcp_f32 v11, v10")
    e("s_nop 0")
    e("v_mul_f32 v12, v8, v11")
    e("v_fma_f32 v13, -v12, v10, v8")
    e("v_fma_f32 v12, v13, v11, v12")
    e("v_cvt_pk_bf16_f32 v13, v12, v12")
    e("v_lshlrev_b32 v12, 16, v13")
    e("v_mul_f32 v12, v12, v9")
    e("v_cvt_pk_bf16_f32 v13, v12, v12")
    e("v_lshrrev_b32 v5, 4, v0")
    e("s_movk_i32 s20, 3456")
    e("v_mul_lo_u32 v5, v5, s20")
    e("v_and_b32 v6, 15, v0")
    e("v_lshlrev_b32 v6, 1, v6")
    e("v_add_u32 v5, v5, v6")
    e("v_add_u32 v5, s21, v5")
    e("buffer_store_short v13, v5, s[56:59], 0 offen")
    e("K3_END:")
    e("s_endpgm")
    kernel_desc(name, 136)

K4_RED = 9 * 6144
K4_LDS = K4_RED + 9 * 1024

def k4():
    name = "down_kernel"
    kernel_header(name)
    e("s_cmp_ge_u32 s2, 40")
    e("s_cbranch_scc1 K4_END")
    e("s_load_dwordx2 s[4:5], s[0:1], 80")
    e("s_load_dwordx2 s[8:9], s[0:1], 88")
    e("s_load_dwordx2 s[14:15], s[0:1], 104")
    e("s_waitcnt lgkmcnt(0)")
    srd(40, 4, D_ * F_ * 2)
    srd(44, 8, TB)
    srd(48, 14, TB, WS_HN)
    srd(52, 14, TB, WS_H)
    srd(56, 14, 8 * F_ * 2, WS_GU)
    srd(60, 14, 32, WS_TOP)
    e("v_and_b32 v1, 63, v0")
    e("v_lshrrev_b32 v2, 6, v0")
    e("s_nop 0")
    e("v_readfirstlane_b32 s18, v2")
    e("s_nop 3")
    e("s_mul_i32 s19, s18, 192")
    e("v_lshrrev_b32 v4, 1, v1")
    e("v_add_u32 v4, s19, v4")
    e("s_movk_i32 s20, 1280")
    e("v_mul_lo_u32 v4, v4, s20")
    e("v_and_b32 v5, 1, v1")
    e("v_lshlrev_b32 v5, 4, v5")
    e("v_add_u32 v4, v4, v5")
    e("s_lshl_b32 s21, s2, 5")
    e("v_add_u32 v4, s21, v4")
    for i in range(6):
        e(f"s_mov_b32 s22, {32*1280*i}")
        e(f"buffer_load_dwordx4 v[{64+4*i}:{67+4*i}], v4, s[40:43], s22 offen")
    e("v_and_b32 v21, 7, v1")
    e("s_movk_i32 s20, 3456")
    e("v_mul_lo_u32 v22, v21, s20")
    e("v_lshrrev_b32 v3, 4, v1")
    e("v_lshlrev_b32 v23, 4, v3")
    e("v_add_u32 v22, v22, v23")
    e("s_mul_i32 s19, s18, 384")
    e("v_add_u32 v22, s19, v22")
    for ks in range(6):
        e(f"buffer_load_dwordx4 v[{104+4*ks}:{107+4*ks}], v22, s[56:59], 0 offen offset:{64*ks}")
    e("s_mul_i32 s24, s18, 6144")
    e("v_lshlrev_b32 v4, 4, v1")
    e("v_add_u32 v4, s24, v4")
    e("s_waitcnt vmcnt(6)")
    for i in range(6):
        e(f"ds_write_b128 v4, v[{64+4*i}:{67+4*i}] offset:{1024*i}")
    e("v_and_b32 v2, 15, v1")
    e("v_lshlrev_b32 v5, 8, v3")
    e("v_lshlrev_b32 v6, 1, v2")
    e("v_add_u32 v5, v5, v6")
    e("v_add_u32 v5, s24, v5")
    for i in range(4):
        e(f"v_mov_b32 v{128+i}, 0")
    e("s_waitcnt lgkmcnt(0)")
    for ks in range(6):
        for i in range(8):
            off = (32 * ks + i) * 32
            e(f"ds_read_u16 v{32+i}, v5 offset:{off}")
        e("s_waitcnt vmcnt(0) lgkmcnt(0)")
        for i in range(4):
            e(f"v_lshl_or_b32 v{24+i}, v{32+2*i+1}, 16, v{32+2*i}")
        e("s_nop 1")
        e(f"v_mfma_f32_16x16x32_bf16 v[128:131], v[{104+4*ks}:{107+4*ks}], v[24:27], v[128:131]")
        e("s_nop 7")
    e("s_nop 7")
    e("s_lshl_b32 s25, s18, 10")
    e("v_lshlrev_b32 v4, 8, v3")
    e("v_lshlrev_b32 v6, 2, v2")
    e("v_add_u32 v4, v4, v6")
    e("v_add_u32 v4, s25, v4")
    for i in range(4):
        e(f"ds_write_b32 v4, v{128+i} offset:{K4_RED+64*i}")
    e("s_waitcnt lgkmcnt(0)")
    e("s_barrier")
    e("s_cmp_ge_u32 s18, 2")
    e("s_cbranch_scc1 K4_END")
    e("v_lshrrev_b32 v5, 4, v0")
    e("v_lshlrev_b32 v6, 2, v5")
    e("buffer_load_dword v20, v6, s[60:63], 0 offen")
    e("v_lshlrev_b32 v4, 2, v0")
    for w in range(9):
        e(f"ds_read_b32 v{8+w}, v4 offset:{K4_RED+1024*w}")
    e("s_waitcnt vmcnt(0)")
    e("v_and_b32 v21, 2047, v20")
    e("v_sub_u32 v21, 2047, v21")
    e("s_movk_i32 s20, 1280")
    e("v_mul_lo_u32 v21, v21, s20")
    e("v_and_b32 v6, 15, v0")
    e("v_lshlrev_b32 v6, 1, v6")
    e("v_add_u32 v21, v21, v6")
    e("v_add_u32 v21, s21, v21")
    e("buffer_load_ushort v22, v21, s[52:55], 0 offen")
    e("buffer_load_ushort v23, v21, s[48:51], 0 offen")
    e("v_lshrrev_b32 v24, 11, v20")
    e("v_and_b32 v25, 0x7fff, v24")
    e("v_xor_b32 v26, 0xffff, v24")
    e("v_cmp_lt_u32 vcc, 0x7fff, v24")
    e("s_nop 1")
    e("v_cndmask_b32 v24, v26, v25, vcc")
    e("v_lshlrev_b32 v24, 16, v24")
    e("v_mul_f32 v25, 0xbfb8aa3b, v24")
    e("v_exp_f32 v25, v25")
    e("s_nop 0")
    e("v_add_f32 v25, 1.0, v25")
    e("v_rcp_f32 v26, v25")
    e("s_nop 0")
    e("v_fma_f32 v27, -v26, v25, 1.0")
    e("v_fma_f32 v26, v27, v26, v26")
    e("v_cvt_pk_bf16_f32 v27, v26, v26")
    e("v_lshlrev_b32 v26, 16, v27")
    e("s_waitcnt lgkmcnt(0)")
    for w in range(1, 9):
        e(f"v_add_f32 v8, v8, v{8+w}")
    e("v_cvt_pk_bf16_f32 v9, v8, v8")
    e("v_lshlrev_b32 v8, 16, v9")
    e("v_mul_f32 v8, v8, v26")
    e("v_cvt_pk_bf16_f32 v9, v8, v8")
    e("v_lshlrev_b32 v8, 16, v9")
    e("s_waitcnt vmcnt(0)")
    e("v_lshlrev_b32 v22, 16, v22")
    e("v_lshlrev_b32 v23, 16, v23")
    e("v_add_f32 v8, v8, v23")
    e("v_cvt_pk_bf16_f32 v9, v8, v8")
    e("v_lshlrev_b32 v8, 16, v9")
    e("v_add_f32 v8, v8, v22")
    e("v_cvt_pk_bf16_f32 v9, v8, v8")
    e("buffer_store_short v9, v21, s[44:47], 0 offen")
    e("K4_END:")
    e("s_endpgm")
    kernel_desc(name, 136)

def main():
    hdr = open(OUT0 + ".ref").read().split("; Override launch geometry")[0]
    e(hdr.rstrip("\n"))
    e(f"; @launch kernel=kvt_kernel grid=(320,1,1) block=(256,1,1) lds={K0_LDS}")
    e(f"; @launch kernel=conv_kernel grid=(640,1,1) block=(128,1,1) lds={K1_LDS}")
    e(f"; @launch kernel=rows_kernel grid=(256,1,1) block=(512,1,1) lds={K2_LDS}")
    e(f"; @launch kernel=gateup_kernel grid=(108,1,1) block=(256,1,1) lds={K3_LDS}")
    e(f"; @launch kernel=down_kernel grid=(40,1,1) block=(576,1,1) lds={K4_LDS}")
    if "nop4" in EXP:
        for i in range(4):
            e(f"; @launch kernel=nop_kernel grid=(1,1,1) block=(64,1,1) lds=0")
    e('.amdgcn_target "amdgcn-amd-amdhsa--gfx950"')
    e(".text")
    if "nop4" in EXP:
        kernel_header("nop_kernel"); e("s_endpgm"); kernel_desc("nop_kernel", 8)
    k0(); k1(); k2(); k3(); k4()
    e('.section .rodata,"a"')
    for k in KD:
        e(k)
    open(OUT, "w").write("\n".join(L) + "\n")

main()
```

```python
import sys, os
EXP = os.environ.get("EXP", "")

NAME = "sequential_preLN__ssm_conv_h3__moe_arch_mod__prompt"
OUT0 = "cdna_kernels/%s.s" % NAME
OUT = os.environ.get("OUT", OUT0)

L = []
def e(s=""):
    L.append(s)

S_, D_, F_ = 2048, 640, 1728
ROWB = D_ * 2
TB = S_ * ROWB
WS_Z = 0
WS_H = TB
WS_HN = 2 * TB
WS_RK = 3 * TB
WS_GU = WS_RK + 8192
WS_TOP = WS_GU + 32768
WS_KVT = WS_TOP + 4096
WS_WT1 = WS_KVT + TB
WS_WT2 = WS_WT1 + 4423680
WS_SIZE = 268435456

def srd(sd, sb, nbytes, add=0):
    if add:
        e(f"s_add_u32 s{sd}, s{sb}, {add}")
        e(f"s_addc_u32 s{sd+1}, s{sb+1}, 0")
    else:
        e(f"s_mov_b32 s{sd}, s{sb}")
        e(f"s_mov_b32 s{sd+1}, s{sb+1}")
    e(f"s_mov_b32 s{sd+2}, {nbytes}")
    e(f"s_mov_b32 s{sd+3}, 0x00020000")

def kernel_header(name):
    e(f".globl {name}")
    e(".p2align 8")
    e(f".type {name},@function")
    e(f"{name}:")

KD = []
def kernel_desc(name, vgpr, sgpr=102):
    acc = (vgpr + 3) // 4 * 4
    KD.append(f""".p2align 6
.amdhsa_kernel {name}
  .amdhsa_next_free_vgpr {vgpr}
  .amdhsa_next_free_sgpr {sgpr}
  .amdhsa_accum_offset {acc}
  .amdhsa_group_segment_fixed_size 0
  .amdhsa_kernarg_size 112
  .amdhsa_user_sgpr_count 2
  .amdhsa_user_sgpr_kernarg_segment_ptr 1
  .amdhsa_system_sgpr_workgroup_id_x 1
.end_amdhsa_kernel""")

def round_list(regs, tmp):
    n = len(regs)
    assert n % 2 == 0
    for i in range(0, n, 2):
        e(f"v_cvt_pk_bf16_f32 v{tmp[i//2]}, v{regs[i]}, v{regs[i+1]}")
    for i in range(0, n, 2):
        e(f"v_lshlrev_b32 v{regs[i]}, 16, v{tmp[i//2]}")
        e(f"v_and_b32 v{regs[i+1]}, 0xffff0000, v{tmp[i//2]}")

def wave_reduce(op, v, vt, sdst):
    e("s_nop 1")
    e(f"{op}_dpp v{v}, v{v}, v{v} quad_perm:[1,0,3,2] row_mask:0xf bank_mask:0xf")
    e("s_nop 1")
    e(f"{op}_dpp v{v}, v{v}, v{v} quad_perm:[2,3,0,1] row_mask:0xf bank_mask:0xf")
    e("s_nop 1")
    e(f"{op}_dpp v{v}, v{v}, v{v} row_half_mirror row_mask:0xf bank_mask:0xf")
    e("s_nop 1")
    e(f"{op}_dpp v{v}, v{v}, v{v} row_mirror row_mask:0xf bank_mask:0xf")
    e("s_nop 1")
    e(f"{op}_dpp v{v}, v{v}, v{v} row_bcast:15 row_mask:0xa bank_mask:0xf")
    e("s_nop 1")
    e(f"{op}_dpp v{v}, v{v}, v{v} row_bcast:31 row_mask:0xc bank_mask:0xf")
    e("s_nop 1")
    e(f"v_readlane_b32 s{sdst}, v{v}, 63")
    e("s_nop 3")

K0_RS = 144
K0_LDS = 64 * K0_RS

def k0():
    name = "kvt_kernel"
    kernel_header(name)
    e("s_cmp_ge_u32 s2, 320")
    e("s_cbranch_scc1 K0_END")
    e("s_load_dwordx4 s[4:7], s[0:1], 8")
    e("s_load_dwordx2 s[8:9], s[0:1], 24")
    e("s_load_dwordx2 s[14:15], s[0:1], 104")
    e("s_mul_hi_u32 s16, s2, 0x1999999a")
    e("s_mul_i32 s17, s16, 10")
    e("s_sub_u32 s17, s2, s17")
    e("v_and_b32 v1, 7, v0")
    e("v_lshrrev_b32 v2, 3, v0")
    e("s_waitcnt lgkmcnt(0)")
    srd(40, 4, TB)
    srd(44, 6, TB)
    srd(48, 8, D_ * 8)
    srd(52, 14, TB, WS_KVT)
    e("s_lshl_b32 s18, s17, 9")
    e("v_lshlrev_b32 v3, 6, v1")
    e("v_add_u32 v3, s18, v3")
    for i in range(4):
        e(f"buffer_load_dwordx4 v[{8+4*i}:{11+4*i}], v3, s[48:51], 0 offen offset:{16*i}")
    e("s_lshl_b32 s19, s16, 6")
    e("v_lshlrev_b32 v4, 1, v2")
    e("v_add_u32 v4, s19, v4")
    e("s_movk_i32 s20, 1280")
    e("v_mul_lo_u32 v4, v4, s20")
    e("s_lshl_b32 s21, s17, 7")
    e("v_lshlrev_b32 v5, 4, v1")
    e("v_add_u32 v4, v4, v5")
    e("v_add_u32 v4, s21, v4")
    e("v_subrev_u32 v5, 3840, v4")
    KR = 24
    VR = 44
    for r in range(3):
        e(f"buffer_load_dwordx4 v[{KR+4*r}:{KR+4*r+3}], v5, s[40:43], 0 offen offset:{1280*r}")
    for r in range(2):
        e(f"buffer_load_dwordx4 v[{KR+12+4*r}:{KR+12+4*r+3}], v4, s[40:43], 0 offen offset:{1280*r}")
    for r in range(2):
        e(f"buffer_load_dwordx4 v[{VR+4*r}:{VR+4*r+3}], v4, s[44:47], 0 offen offset:{1280*r}")
    e(f"s_movk_i32 s22, {8*K0_RS}")
    e("v_mul_lo_u32 v6, v1, s22")
    e("v_lshlrev_b32 v7, 2, v2")
    e("v_sub_u32 v7, 124, v7")
    e("v_add_u32 v6, v6, v7")
    e("s_waitcnt vmcnt(0)")
    KF = list(range(64, 74))
    WF = list(range(74, 82))
    T = list(range(82, 86))
    U = list(range(86, 90))
    TMP = [90, 91]
    for p in range(4):
        for r in range(5):
            e(f"v_lshlrev_b32 v{KF[r]}, 16, v{KR+4*r+p}")
            e(f"v_and_b32 v{KF[5+r]}, 0xffff0000, v{KR+4*r+p}")
        for h in range(2):
            c = 2 * p + h
            e(f"v_lshlrev_b32 v{WF[4*h+0]}, 16, v{8+2*c}")
            e(f"v_and_b32 v{WF[4*h+1]}, 0xffff0000, v{8+2*c}")
            e(f"v_lshlrev_b32 v{WF[4*h+2]}, 16, v{8+2*c+1}")
            e(f"v_and_b32 v{WF[4*h+3]}, 0xffff0000, v{8+2*c+1}")
        for h in range(2):
            for r in range(2):
                e(f"v_mul_f32 v{T[2*h+r]}, v{WF[4*h+3]}, v{KF[5*h+r]}")
        round_list(T, TMP)
        for j in (2, 1, 0):
            for h in range(2):
                for r in range(2):
                    e(f"v_mul_f32 v{U[2*h+r]}, v{WF[4*h+j]}, v{KF[5*h+r+3-j]}")
            round_list(U, TMP)
            for q in range(4):
                e(f"v_add_f32 v{T[q]}, v{T[q]}, v{U[q]}")
            round_list(T, TMP)
        for r in range(2):
            e(f"v_lshlrev_b32 v{U[r]}, 16, v{VR+4*r+p}")
            e(f"v_and_b32 v{U[2+r]}, 0xffff0000, v{VR+4*r+p}")
        for q in range(4):
            e(f"v_mul_f32 v{T[q]}, v{T[q]}, v{U[q]}")
        for h in range(2):
            e(f"v_cvt_pk_bf16_f32 v{TMP[h]}, v{T[2*h+1]}, v{T[2*h]}")
            e(f"ds_write_b32 v6, v{TMP[h]} offset:{(2*p+h)*K0_RS}")
    e("s_waitcnt lgkmcnt(0)")
    e("s_barrier")
    e(f"s_movk_i32 s22, {K0_RS}")
    e("v_mul_lo_u32 v6, v2, s22")
    e("v_lshlrev_b32 v7, 4, v1")
    e("v_add_u32 v6, v6, v7")
    e("ds_read_b128 v[8:11], v6")
    e(f"ds_read_b128 v[12:15], v6 offset:{32*K0_RS}")
    e("s_lshl_b32 s18, s17, 18")
    e("s_lshl_b32 s19, s16, 7")
    e("s_sub_u32 s19, 3968, s19")
    e("s_add_u32 s18, s18, s19")
    e("v_lshlrev_b32 v4, 12, v2")
    e("v_add_u32 v4, v4, v7")
    e("v_add_u32 v4, s18, v4")
    e("s_mov_b32 s23, 0x20000")
    e("s_waitcnt lgkmcnt(0)")
    e("buffer_store_dwordx4 v[8:11], v4, s[52:55], 0 offen")
    e("buffer_store_dwordx4 v[12:15], v4, s[52:55], s23 offen")
    e("K0_END:")
    e("s_endpgm")
    kernel_desc(name, 96)

KE = 0
KO = 4164
XR = 8288
K1_LDS = 16384

def k1():
    name = "conv_kernel"
    kernel_header(name)
    e("s_cmp_ge_u32 s2, 1055")
    e("s_cbranch_scc1 K1_END")
    e("s_cmp_ge_u32 s2, 640")
    e("s_cbranch_scc1 K1_RELAY")
    if "stamp" in EXP:
        e("s_memtime s[80:81]"); e("s_memrealtime s[82:83]")
    e("s_load_dwordx2 s[10:11], s[0:1], 32")
    e("s_load_dwordx2 s[12:13], s[0:1], 40")
    e("s_load_dwordx2 s[14:15], s[0:1], 104")
    e("v_and_b32 v1, 63, v0")
    e("v_lshrrev_b32 v2, 6, v0")
    e("s_lshl_b32 s19, s2, 12")
    e("v_lshlrev_b32 v3, 4, v0")
    e("v_add_u32 v3, s19, v3")
    e("v_subrev_u32 v4, 4, v3")
    e("v_readfirstlane_b32 s18, v2")
    e("s_waitcnt lgkmcnt(0)")
    if "stamp" in EXP:
        e("s_memtime s[70:71]")
    e("s_and_b32 s17, s2, 0xfffffffe")
    e("s_lshl_b32 s17, s17, 1")
    e("s_add_u32 s12, s12, s17")
    e("s_addc_u32 s13, s13, 0")
    e("s_load_dword s32, s[12:13], 0")
    srd(48, 10, D_ * S_ * 2)
    srd(44, 14, TB, WS_KVT)
    srd(52, 14, TB, WS_Z)
    for r in range(2):
        e(f"buffer_load_dwordx4 v[{20+4*r}:{23+4*r}], v3, s[48:51], 0 offen offset:{2048*r}")
    for r in range(2):
        e(f"buffer_load_dword v{28+r}, v4, s[48:51], 0 offen offset:{2048*r}")
    for r in range(2):
        e(f"buffer_load_dwordx4 v[{32+4*r}:{35+4*r}], v3, s[44:47], 0 offen offset:{2048*r}")
    e("v_mov_b32 v8, 0")
    e("v_mov_b32 v9, 0")
    e("v_mov_b32 v10, 0")
    e("v_mov_b32 v11, 0")
    e("v_lshlrev_b32 v12, 4, v0")
    e("v_cmp_gt_u32 vcc, 30, v0")
    e("s_and_saveexec_b64 s[38:39], vcc")
    e(f"ds_write_b128 v12, v[8:11] offset:{XR+4096}")
    e("s_mov_b64 exec, s[38:39]")
    e("v_lshlrev_b32 v13, 2, v0")
    e("v_cmp_gt_u32 vcc, 8, v0")
    e("s_and_saveexec_b64 s[38:39], vcc")
    e(f"ds_write_b32 v13, v8 offset:{KE}")
    e("s_mov_b64 exec, s[38:39]")
    e("v_cmp_gt_u32 vcc, 7, v0")
    e("s_and_saveexec_b64 s[38:39], vcc")
    e(f"ds_write_b32 v13, v8 offset:{KO}")
    e("s_mov_b64 exec, s[38:39]")
    e("v_and_b32 v2, 15, v1")
    e("v_lshrrev_b32 v3, 4, v1")
    e("v_lshlrev_b32 v4, 3, v3")
    e("v_add_u32 v4, v4, v2")
    e("v_lshlrev_b32 v4, 1, v4")
    e("v_and_b32 v5, 1, v2")
    e("v_cmp_eq_u32 vcc, 1, v5")
    e(f"v_mov_b32 v6, {KO}")
    e(f"v_mov_b32 v7, {KE+2}")
    e("v_cndmask_b32 v5, v6, v7, vcc")
    e("s_lshl_b32 s20, s18, 8")
    e("v_add_u32 v40, v4, v5")
    e("v_add_u32 v40, s20, v40")
    e("v_add_u32 v41, 1024, v40")
    e("v_add_u32 v42, 2048, v40")
    e("v_add_u32 v43, 3072, v40")
    e("v_lshlrev_b32 v44, 5, v2")
    e("v_lshlrev_b32 v13, 4, v3")
    e(f"v_sub_u32 v44, {XR+480}, v44")
    e("v_add_u32 v44, v44, v13")
    e("v_add_u32 v44, s20, v44")
    ACC = 128
    for i in range(32):
        e(f"v_mov_b32 v{ACC+i}, 0")
    if "stamp" in EXP:
        e("s_memtime s[72:73]")
    e("s_waitcnt vmcnt(2)")
    if "stamp" in EXP:
        e("s_memtime s[74:75]")
    e("v_cmp_eq_u32 vcc, 0, v0")
    e("s_nop 1")
    e("v_cndmask_b32 v28, v28, v8, vcc")
    for r in range(2):
        b = 20 + 4 * r
        e(f"ds_write_b128 v12, v[{b}:{b+3}] offset:{KE+32+2048*r}")
        e(f"v_alignbit_b32 v16, v{b}, v{28+r}, 16")
        e(f"v_alignbit_b32 v17, v{b+1}, v{b}, 16")
        e(f"v_alignbit_b32 v18, v{b+2}, v{b+1}, 16")
        e(f"v_alignbit_b32 v19, v{b+3}, v{b+2}, 16")
        e(f"ds_write_b128 v12, v[16:19] offset:{KO+28+2048*r}")
        e("s_nop 1")
    e("s_waitcnt vmcnt(0)")
    for r in range(2):
        e(f"ds_write_b128 v12, v[{32+4*r}:{35+4*r}] offset:{XR+2048*r}")
    e("s_waitcnt lgkmcnt(0)")
    e("s_and_b32 s35, s2, 1")
    e("s_cmp_eq_u32 s35, 0")
    e("s_cbranch_scc1 K1_DLO")
    e("s_and_b32 s34, s32, 0xffff0000")
    e("s_branch K1_DDONE")
    e("K1_DLO:")
    e("s_lshl_b32 s34, s32, 16")
    e("K1_DDONE:")
    e("s_barrier")
    if "stamp" in EXP:
        e("s_memtime s[84:85]")
    SETS = [(64, 96), (160, 192)]
    def reads(c0, st):
        A, B = SETS[st]
        out = []
        for t in range(8):
            ar = 40 + t // 2
            off = (64 * c0 + 512 * (t & 1)) // 4
            out.append(f"ds_read2_b32 v[{A+4*t}:{A+4*t+1}], v{ar} offset0:{off} offset1:{off+1}")
            out.append(f"ds_read2_b32 v[{A+4*t+2}:{A+4*t+3}], v{ar} offset0:{off+2} offset1:{off+3}")
        for wp in range(8):
            out.append(f"ds_read_b128 v[{B+4*wp}:{B+4*wp+3}], v44 offset:{64*c0+512*(7-wp)}")
        return out
    for x in reads(0, 0):
        e(x)
    NC = 4
    for c0 in range(NC):
        st = c0 & 1
        A, B = SETS[st]
        e("s_waitcnt lgkmcnt(0)")
        nxt = reads(c0 + 1, st ^ 1) if c0 < NC - 1 else []
        for j in range(8):
            for t in range(j + 1):
                a = A + 4 * t
                b = B + 4 * (j - t)
                d = ACC + 4 * j
                e(f"v_mfma_f32_16x16x32_bf16 v[{d}:{d+3}], v[{a}:{a+3}], v[{b}:{b+3}], v[{d}:{d+3}]")
                for _ in range(2):
                    if nxt:
                        e(nxt.pop(0))
    e("s_nop 15")
    if "stamp" in EXP:
        e("s_memtime s[86:87]")
    e("s_barrier")
    e("v_lshlrev_b32 v5, 2, v1")
    e("s_xor_b32 s21, s18, 1")
    e("s_lshl_b32 s21, s21, 12")
    e("v_add_u32 v6, s21, v5")
    e("s_lshl_b32 s22, s18, 12")
    e("v_add_u32 v7, s22, v5")
    e("s_cmp_eq_u32 s18, 0")
    e("s_cbranch_scc1 K1_W0")
    for q in range(16):
        e(f"ds_write_b32 v6, v{ACC+q} offset:{256*q}")
    for q in range(16):
        e(f"v_mov_b32 v{ACC+q}, v{ACC+16+q}")
    e("s_branch K1_XDONE")
    e("K1_W0:")
    for q in range(16):
        e(f"ds_write_b32 v6, v{ACC+16+q} offset:{256*q}")
    e("K1_XDONE:")
    e("s_waitcnt lgkmcnt(0)")
    e("s_barrier")
    for q in range(16):
        e(f"ds_read_b32 v{64+q}, v7 offset:{256*q}")
    e("v_lshlrev_b32 v4, 5, v2")
    e("v_lshlrev_b32 v5, 3, v3")
    e("v_add_u32 v4, v4, v5")
    e("s_lshl_b32 s23, s18, 11")
    e(f"v_sub_u32 v8, {XR+4088-1536}, v4")
    e("v_subrev_u32 v8, s23, v8")
    for j4 in range(4):
        e(f"ds_read_b64 v[{80+2*j4}:{81+2*j4}], v8 offset:{512*(3-j4)}")
    e("v_add_u32 v9, s19, v4")
    e("v_add_u32 v9, s23, v9")
    e("s_waitcnt lgkmcnt(0)")
    for j4 in range(4):
        a = ACC + 4 * j4
        Y = [a, a + 1, a + 2, a + 3]
        for i in range(4):
            e(f"v_add_f32 v{Y[i]}, v{Y[i]}, v{64+4*j4+i}")
        round_list(Y, [20, 21])
        e(f"v_and_b32 v24, 0xffff0000, v{81+2*j4}")
        e(f"v_lshlrev_b32 v25, 16, v{81+2*j4}")
        e(f"v_and_b32 v26, 0xffff0000, v{80+2*j4}")
        e(f"v_lshlrev_b32 v27, 16, v{80+2*j4}")
        for i in range(4):
            e(f"v_mul_f32 v{24+i}, s34, v{24+i}")
        round_list([24, 25, 26, 27], [20, 21])
        for i in range(4):
            e(f"v_add_f32 v{24+i}, v{24+i}, v{Y[i]}")
        e(f"v_cvt_pk_bf16_f32 v{96+2*j4}, v24, v25")
        e(f"v_cvt_pk_bf16_f32 v{97+2*j4}, v26, v27")
        e(f"buffer_store_dwordx2 v[{96+2*j4}:{97+2*j4}], v9, s[52:55], 0 offen offset:{512*j4}")
    if "stamp" in EXP:
        e("s_waitcnt vmcnt(0)")
        e("s_memtime s[88:89]"); e("s_memrealtime s[90:91]")
        e("s_load_dwordx2 s[92:93], s[0:1], 96")
        e("s_waitcnt lgkmcnt(0)")
        srd(96, 92, 256)
        e("s_cmp_lg_u32 s2, 300"); e("s_cbranch_scc1 K1_END")
        e("s_cmp_lg_u32 s18, 0"); e("s_cbranch_scc1 K1_END")
        e("s_sub_u32 s84, s84, s80"); e("s_sub_u32 s86, s86, s80"); e("s_sub_u32 s88, s88, s80"); e("s_sub_u32 s90, s90, s82")
        e("s_sub_u32 s70, s70, s80"); e("s_sub_u32 s72, s72, s80"); e("s_sub_u32 s74, s74, s80")
        for i, r in enumerate([84, 86, 88, 90, 70, 72, 74, 74]):
            e(f"v_mov_b32 v{12+i}, s{r}")
        e("v_mov_b32 v10, 0")
        e("buffer_store_dwordx4 v[12:15], v10, s[96:99], 0 offen")
        e("buffer_store_dwordx4 v[16:19], v10, s[96:99], 0 offen offset:16")
    e("s_endpgm")
    e("K1_RELAY:")
    e("s_load_dwordx4 s[4:7], s[0:1], 64")
    e("s_load_dwordx2 s[8:9], s[0:1], 80")
    e("s_load_dwordx2 s[14:15], s[0:1], 104")
    e("v_and_b32 v1, 63, v0")
    e("v_lshrrev_b32 v2, 6, v0")
    e("s_mov_b32 s30, 0x05040100")
    e("s_mov_b32 s31, 0x07060302")
    e("v_readfirstlane_b32 s18, v2")
    e("s_sub_u32 s16, s2, 640")
    e("s_lshl_b32 s16, s16, 1")
    e("s_nop 2")
    e("s_add_u32 s16, s16, s18")
    e("v_lshrrev_b32 v3, 3, v1")
    e("v_bfe_u32 v4, v1, 1, 2")
    e("v_and_b32 v5, 1, v1")
    e("s_cmp_ge_u32 s16, 560")
    e("s_cbranch_scc1 K1_RDOWN")
    e("s_cmp_ge_u32 s16, 280")
    e("s_cselect_b32 s17, 1, 0")
    e("s_mul_i32 s19, s17, 280")
    e("s_sub_u32 s16, s16, s19")
    e("s_mul_hi_u32 s20, s16, 306783379")
    e("s_mul_i32 s19, s20, 14")
    e("s_sub_u32 s21, s16, s19")
    e("s_waitcnt lgkmcnt(0)")
    e("s_cmp_eq_u32 s17, 0")
    e("s_cselect_b32 s4, s4, s6")
    e("s_cselect_b32 s5, s5, s7")
    srd(40, 4, D_ * F_ * 2)
    srd(44, 14, 4423680, WS_WT1)
    e("s_movk_i32 s22, 3456")
    e("s_movk_i32 s23, 108")
    e("s_mul_i32 s24, s17, 20")
    e("s_add_u32 s24, s24, s20")
    e("s_lshl_b32 s24, s24, 10")
    e("s_mov_b32 s25, 40960")
    e("s_branch K1_RGO")
    e("K1_RDOWN:")
    e("s_sub_u32 s16, s16, 560")
    e("s_mul_hi_u32 s20, s16, 858993460")
    e("s_mul_i32 s19, s20, 5")
    e("s_sub_u32 s21, s16, s19")
    e("s_waitcnt lgkmcnt(0)")
    srd(40, 8, D_ * F_ * 2)
    srd(44, 14, 2211840, WS_WT2)
    e("s_movk_i32 s22, 1280")
    e("s_movk_i32 s23, 40")
    e("s_lshl_b32 s24, s20, 10")
    e("s_mov_b32 s25, 55296")
    e("K1_RGO:")
    e("s_lshl_b32 s26, s20, 5")
    e("v_lshlrev_b32 v6, 3, v4")
    e("v_add_u32 v6, s26, v6")
    e("v_mul_lo_u32 v6, v6, s22")
    e("s_lshl_b32 s27, s21, 8")
    e("v_lshlrev_b32 v7, 5, v3")
    e("v_add_u32 v6, v6, v7")
    e("v_lshlrev_b32 v7, 4, v5")
    e("v_add_u32 v6, v6, v7")
    e("v_add_u32 v6, s27, v6")
    e("s_mov_b32 s28, 0")
    for i in range(8):
        e(f"buffer_load_dwordx4 v[{8+4*i}:{11+4*i}], v6, s[40:43], s28 offen")
        if i < 7:
            e("s_add_u32 s28, s28, s22")
    e("s_lshl_b32 s29, s18, 13")
    e("v_lshlrev_b32 v72, 7, v1")
    e("v_add_u32 v72, s29, v72")
    e("v_and_b32 v73, 7, v1")
    e("v_lshlrev_b32 v73, 4, v73")
    e("v_lshlrev_b32 v74, 7, v3")
    e("v_lshlrev_b32 v75, 4, v3")
    e("v_xor_b32 v75, v75, v73")
    e("v_add_u32 v74, v74, v75")
    e("v_add_u32 v74, s29, v74")
    e("s_waitcnt vmcnt(0)")
    for c in range(8):
        d, h = c >> 1, c & 1
        for p in range(4):
            e(f"v_perm_b32 v{40+4*c+p}, v{8+4*(2*p+1)+d}, v{8+4*(2*p)+d}, s{30+h}")
    for c in range(8):
        e(f"v_xor_b32 v75, {16*c}, v73")
        e("v_add_u32 v75, v72, v75")
        e(f"ds_write_b128 v75, v[{40+4*c}:{43+4*c}]")
    e("s_waitcnt lgkmcnt(0)")
    for q in range(8):
        e(f"ds_read_b128 v[{8+4*q}:{11+4*q}], v74 offset:{1024*q}")
    e("s_lshl_b32 s26, s21, 3")
    e("s_mul_i32 s27, s26, s25")
    e("s_add_u32 s27, s27, s24")
    e("v_lshlrev_b32 v6, 4, v1")
    e("s_waitcnt lgkmcnt(0)")
    for q in range(8):
        e(f"s_cmp_ge_u32 s26, s23")
        e("s_cbranch_scc1 K1_END")
        e(f"buffer_store_dwordx4 v[{8+4*q}:{11+4*q}], v6, s[44:47], s27 offen")
        e("s_add_u32 s26, s26, 1")
        e("s_add_u32 s27, s27, s25")
    e("K1_END:")
    e("s_endpgm")
    kernel_desc(name, 224)

def unpack10(src4, src1, dst):
    for i in range(4):
        e(f"v_lshlrev_b32 v{dst[2*i]}, 16, v{src4+i}")
        e(f"v_and_b32 v{dst[2*i+1]}, 0xffff0000, v{src4+i}")
    e(f"v_lshlrev_b32 v{dst[8]}, 16, v{src1}")
    e(f"v_and_b32 v{dst[9]}, 0xffff0000, v{src1}")

def layernorm(X, OUTR, TMP, sc):
    e(f"v_add_f32 v60, v{X[0]}, v{X[1]}")
    for i in range(2, 10):
        e(f"v_add_f32 v60, v60, v{X[i]}")
    wave_reduce("v_add_f32", 60, None, sc)
    e(f"v_mov_b32 v61, 0x3acccccd")
    e(f"v_mul_f32 v61, s{sc}, v61")
    e(f"v_sub_f32 v62, v{X[0]}, v61")
    e("v_mul_f32 v60, v62, v62")
    for i in range(1, 10):
        e(f"v_sub_f32 v62, v{X[i]}, v61")
        e("v_fmac_f32 v60, v62, v62")
    wave_reduce("v_add_f32", 60, None, sc + 1)
    e(f"v_mov_b32 v62, 0x3acccccd")
    e(f"v_mul_f32 v62, s{sc+1}, v62")
    e("v_cvt_pk_bf16_f32 v63, v61, v62")
    e("v_lshlrev_b32 v61, 16, v63")
    e("v_and_b32 v62, 0xffff0000, v63")
    e("v_add_f32 v62, 0x3727c5ac, v62")
    e("v_cvt_pk_bf16_f32 v63, v62, v62")
    e("v_lshlrev_b32 v62, 16, v63")
    e("v_sqrt_f32 v62, v62")
    e("s_nop 0")
    e("v_cvt_pk_bf16_f32 v63, v62, v62")
    e("v_lshlrev_b32 v62, 16, v63")
    e("v_rcp_f32 v63, v62")
    e("s_nop 0")
    for i in range(10):
        e(f"v_sub_f32 v{OUTR[i]}, v{X[i]}, v61")
    round_list(OUTR, TMP)
    for i in range(10):
        e(f"v_mul_f32 v60, v{OUTR[i]}, v63")
        e(f"v_fma_f32 v{OUTR[i]}, -v60, v62, v{OUTR[i]}")
        e(f"v_fma_f32 v{OUTR[i]}, v{OUTR[i]}, v63, v60")
    round_list(OUTR, TMP)

def pack_store(R, P, voff4, voff1, srdr):
    for i in range(5):
        e(f"v_cvt_pk_bf16_f32 v{P+i}, v{R[2*i]}, v{R[2*i+1]}")
    e(f"buffer_store_dwordx4 v[{P}:{P+3}], v{voff4}, s[{srdr}:{srdr+3}], 0 offen")
    e(f"buffer_store_dword v{P+4}, v{voff1}, s[{srdr}:{srdr+3}], 0 offen")

K2_LDS = 8 * 1280

def k2():
    name = "rows_kernel"
    kernel_header(name)
    e("s_cmp_ge_u32 s2, 256")
    e("s_cbranch_scc1 K2_END")
    e("s_load_dwordx2 s[4:5], s[0:1], 0")
    e("s_load_dwordx2 s[6:7], s[0:1], 56")
    e("s_load_dwordx2 s[8:9], s[0:1], 88")
    e("s_load_dwordx2 s[14:15], s[0:1], 104")
    e("s_and_b32 s16, s2, 7")
    e("s_lshl_b32 s16, s16, 5")
    e("s_lshr_b32 s17, s2, 3")
    e("s_add_u32 s16, s16, s17")
    e("v_and_b32 v1, 63, v0")
    e("v_lshrrev_b32 v2, 6, v0")
    e("s_lshl_b32 s18, s16, 3")
    e("v_add_u32 v2, s18, v2")
    e("s_movk_i32 s17, 1280")
    e("v_mul_lo_u32 v3, v2, s17")
    e("v_lshlrev_b32 v4, 4, v1")
    e("v_lshlrev_b32 v5, 2, v1")
    e("v_add_u32 v5, 1024, v5")
    e("v_add_u32 v6, v3, v4")
    e("v_add_u32 v7, v3, v5")
    e("v_lshlrev_b32 v30, 12, v0")
    e("s_lshl_b32 s19, s16, 4")
    e("v_add_u32 v30, s19, v30")
    e("s_waitcnt lgkmcnt(0)")
    srd(40, 4, TB)
    srd(44, 6, ROWB)
    srd(48, 8, TB)
    srd(52, 14, TB, WS_Z)
    srd(56, 14, TB, WS_H)
    srd(60, 14, TB, WS_HN)
    srd(64, 14, 8192, WS_RK)
    e("s_mov_b32 s20, 0x200000")
    e("buffer_load_dwordx4 v[32:35], v30, s[52:55], 0 offen")
    e("buffer_load_dwordx4 v[36:39], v30, s[52:55], s20 offen")
    e("buffer_load_dwordx4 v[8:11], v6, s[40:43], 0 offen")
    e("buffer_load_dword v12, v7, s[40:43], 0 offen")
    e("buffer_load_dwordx4 v[24:27], v4, s[44:47], 0 offen")
    e("buffer_load_dword v28, v5, s[44:47], 0 offen")
    e("v_lshlrev_b32 v31, 1, v0")
    e("s_waitcnt vmcnt(4)")
    for r in range(8):
        d16 = "_d16_hi" if r & 1 else ""
        e(f"ds_write_b16{d16} v31, v{32+r//2} offset:{1280*r}")
    e("v_cmp_gt_u32 vcc, 128, v0")
    e("s_and_saveexec_b64 s[30:31], vcc")
    for r in range(8):
        d16 = "_d16_hi" if r & 1 else ""
        e(f"ds_write_b16{d16} v31, v{36+r//2} offset:{1280*r+1024}")
    e("s_mov_b64 exec, s[30:31]")
    X = list(range(64, 74))
    QN = list(range(74, 84))
    Z = list(range(84, 94))
    H = list(range(94, 104))
    TMP = list(range(104, 109))
    e("s_waitcnt vmcnt(2)")
    unpack10(8, 12, X)
    e("s_waitcnt lgkmcnt(0)")
    e("s_barrier")
    e("v_lshrrev_b32 v29, 6, v0")
    e("v_mul_lo_u32 v29, v29, s17")
    e("v_add_u32 v31, v29, v4")
    e("v_add_u32 v29, v29, v5")
    e("ds_read_b128 v[16:19], v31")
    e("ds_read_b32 v20, v29")
    layernorm(X, QN, TMP, 20)
    e("s_waitcnt lgkmcnt(0)")
    unpack10(16, 20, Z)
    for i in range(10):
        e(f"v_mul_f32 v{QN[i]}, v{QN[i]}, v{Z[i]}")
    round_list(QN, TMP)
    for i in range(10):
        e(f"v_add_f32 v{H[i]}, v{X[i]}, v{QN[i]}")
    round_list(H, TMP)
    pack_store(H, 112, 6, 7, 56)
    HN = QN
    layernorm(H, HN, TMP, 22)
    pack_store(HN, 120, 6, 7, 60)
    e("s_waitcnt vmcnt(4)")
    W = Z
    unpack10(24, 28, W)
    e(f"v_mul_f32 v60, v{HN[0]}, v{W[0]}")
    for i in range(1, 10):
        e(f"v_fmac_f32 v60, v{HN[i]}, v{W[i]}")
    wave_reduce("v_add_f32", 60, None, 24)
    for i in range(10):
        e(f"v_add_f32 v{X[i]}, v{H[i]}, v{HN[i]}")
    pack_store(X, 128, 6, 7, 48)
    e("v_mov_b32 v60, s24")
    e("v_cvt_pk_bf16_f32 v61, v60, v60")
    e("v_and_b32 v61, 0xffff, v61")
    e("v_xor_b32 v62, 0xffff, v61")
    e("v_or_b32 v63, 0x8000, v61")
    e("v_cmp_gt_u32 vcc, 0x8000, v61")
    e("s_nop 1")
    e("v_cndmask_b32 v61, v62, v63, vcc")
    e("v_lshlrev_b32 v61, 11, v61")
    e("v_sub_u32 v62, 2047, v2")
    e("v_or_b32 v61, v61, v62")
    e("v_lshlrev_b32 v62, 2, v2")
    e("v_cmp_eq_u32 vcc, 0, v1")
    e("s_and_saveexec_b64 s[30:31], vcc")
    e("buffer_store_dword v61, v62, s[64:67], 0 offen")
    e("K2_END:")
    e("s_endpgm")
    kernel_desc(name, 136)

K3_CAND = 0
K3_TOP = 128
K3_RED = 256
K3_LDS = K3_RED + 8192
NWG3 = 108

def stamp(n, tag="stamp3"):
    if tag in EXP:
        e(f"s_memtime s[{76+2*n}:{77+2*n}]")

def k3():
    name = "ffn_kernel"
    kernel_header(name)
    e(f"s_cmp_ge_u32 s2, {NWG3}")
    e("s_cbranch_scc1 K3_END")
    stamp(0)
    e("s_load_dwordx2 s[10:11], s[0:1], 88")
    e("s_load_dwordx4 s[12:15], s[0:1], 96")
    e("v_and_b32 v1, 63, v0")
    e("v_lshrrev_b32 v2, 6, v0")
    e("v_lshlrev_b32 v3, 5, v0")
    e("v_readfirstlane_b32 s18, v2")
    e("s_lshl_b32 s21, s2, 5")
    e("s_waitcnt lgkmcnt(0)")
    srd(52, 14, 8192, WS_RK)
    e("buffer_load_dwordx4 v[8:11], v3, s[52:55], 0 offen")
    e("buffer_load_dwordx4 v[12:15], v3, s[52:55], 0 offen offset:16")
    srd(40, 14, 4423680, WS_WT1)
    srd(60, 14, 2211840, WS_WT2)
    srd(48, 14, TB, WS_HN)
    srd(56, 14, 8 * F_ * 2, WS_GU)
    srd(64, 10, TB)
    srd(68, 14, TB, WS_H)
    srd(72, 12, 256)
    e("s_mul_i32 s19, s2, 40960")
    e("s_mul_i32 s20, s18, 5120")
    e("s_add_u32 s19, s19, s20")
    e("v_lshlrev_b32 v4, 4, v1")
    e("v_add_u32 v4, s19, v4")
    e("s_movk_i32 s22, 20480")
    for ks in range(5):
        if ks < 4:
            e(f"buffer_load_dwordx4 v[{64+4*ks}:{67+4*ks}], v4, s[40:43], 0 offen offset:{1024*ks}")
            e(f"buffer_load_dwordx4 v[{84+4*ks}:{87+4*ks}], v4, s[40:43], s22 offen offset:{1024*ks}")
        else:
            e("v_add_u32 v5, 4096, v4")
            e(f"buffer_load_dwordx4 v[{64+4*ks}:{67+4*ks}], v5, s[40:43], 0 offen")
            e(f"buffer_load_dwordx4 v[{84+4*ks}:{87+4*ks}], v5, s[40:43], s22 offen")
    e("s_mul_i32 s27, s18, 14")
    e("s_cmp_eq_u32 s18, 3")
    e("s_cselect_b32 s28, 1, 0")
    e("s_sub_u32 s27, s27, s28")
    e("s_cmp_ge_u32 s2, 40")
    e("s_cbranch_scc1 K3_NOWD")
    e("s_mul_i32 s19, s2, 55296")
    e("s_lshl_b32 s20, s27, 10")
    e("s_add_u32 s19, s19, s20")
    e("v_lshlrev_b32 v6, 4, v1")
    e("v_add_u32 v6, s19, v6")
    for i in range(14):
        e(f"s_movk_i32 s22, {4096*(i//4)}")
        e(f"buffer_load_dwordx4 v[{136+4*i}:{139+4*i}], v6, s[60:63], s22 offen offset:{1024*(i%4)}")
    e("s_waitcnt vmcnt(24)")
    e("s_branch K3_WDDONE")
    e("K3_NOWD:")
    e("s_waitcnt vmcnt(10)")
    e("K3_WDDONE:")
    stamp(1)
    K = list(range(8, 16))
    e("v_mov_b32 v20, 0")
    for rnd in range(8):
        e(f"v_max3_u32 v16, v{K[0]}, v{K[1]}, v{K[2]}")
        e(f"v_max3_u32 v17, v{K[3]}, v{K[4]}, v{K[5]}")
        e(f"v_max3_u32 v16, v16, v{K[6]}, v{K[7]}")
        e("v_max_u32 v16, v16, v17")
        wave_reduce("v_max_u32", 16, None, 24)
        e(f"v_writelane_b32 v20, s24, {rnd}")
        if rnd < 7:
            for k in K:
                e(f"v_cmp_ne_u32 vcc, s24, v{k}")
                e("s_nop 1")
                e(f"v_cndmask_b32 v{k}, 0, v{k}, vcc")
    e("s_lshl_b32 s23, s18, 5")
    e("v_lshlrev_b32 v21, 2, v1")
    e("v_add_u32 v21, s23, v21")
    e("v_cmp_gt_u32 vcc, 8, v1")
    e("s_and_saveexec_b64 s[30:31], vcc")
    e(f"ds_write_b32 v21, v20 offset:{K3_CAND}")
    e("s_mov_b64 exec, s[30:31]")
    e("s_waitcnt lgkmcnt(0)")
    e("s_barrier")
    e("v_and_b32 v21, 31, v1")
    e("v_lshlrev_b32 v21, 2, v21")
    e(f"ds_read_b32 v22, v21 offset:{K3_CAND}")
    e("v_mov_b32 v23, 0")
    for i in range(8):
        e(f"ds_read_b128 v[{24+4*i}:{27+4*i}], v23 offset:{K3_CAND+16*i}")
    e("s_waitcnt lgkmcnt(0)")
    e("v_mov_b32 v21, 0")
    for i in range(32):
        e(f"v_cmp_gt_u32 vcc, v{24+i}, v22")
        e("s_nop 1")
        e("v_addc_co_u32 v21, vcc, 0, v21, vcc")
    e("v_lshlrev_b32 v23, 2, v21")
    e("v_cmp_gt_u32 vcc, 8, v21")
    e("s_and_saveexec_b64 s[30:31], vcc")
    e(f"ds_write_b32 v23, v22 offset:{K3_TOP}")
    e("s_mov_b64 exec, s[30:31]")
    e("s_waitcnt lgkmcnt(0)")
    e("s_barrier")
    e("v_and_b32 v21, 7, v1")
    e("v_lshlrev_b32 v21, 2, v21")
    e(f"ds_read_b32 v22, v21 offset:{K3_TOP}")
    e("v_lshrrev_b32 v61, 4, v0")
    e("v_and_b32 v61, 7, v61")
    e("v_lshlrev_b32 v61, 2, v61")
    e(f"ds_read_b32 v60, v61 offset:{K3_TOP}")
    e("s_waitcnt lgkmcnt(0)")
    stamp(2)
    e("v_and_b32 v22, 2047, v22")
    e("v_sub_u32 v22, 2047, v22")
    e("s_movk_i32 s20, 1280")
    e("v_mul_lo_u32 v22, v22, s20")
    e("v_lshrrev_b32 v3, 4, v1")
    e("v_lshlrev_b32 v23, 4, v3")
    e("v_add_u32 v22, v22, v23")
    e("s_mul_i32 s19, s18, 320")
    e("v_add_u32 v22, s19, v22")
    for ks in range(5):
        e(f"buffer_load_dwordx4 v[{104+4*ks}:{107+4*ks}], v22, s[48:51], 0 offen offset:{64*ks}")
    e("v_and_b32 v61, 2047, v60")
    e("v_sub_u32 v61, 2047, v61")
    e("v_mul_lo_u32 v61, v61, s20")
    e("v_and_b32 v62, 15, v0")
    e("v_lshlrev_b32 v62, 1, v62")
    e("v_add_u32 v61, v61, v62")
    e("v_add_u32 v61, s21, v61")
    e("buffer_load_ushort v62, v61, s[68:71], 0 offen")
    e("buffer_load_ushort v63, v61, s[48:51], 0 offen")
    e("v_and_b32 v2, 15, v1")
    for i in range(8):
        e(f"v_mov_b32 v{124+i}, 0")
    for ks in range(5):
        e(f"s_waitcnt vmcnt({6-ks})")
        e(f"v_mfma_f32_16x16x32_bf16 v[124:127], v[{104+4*ks}:{107+4*ks}], v[{64+4*ks}:{67+4*ks}], v[124:127]")
        e(f"v_mfma_f32_16x16x32_bf16 v[128:131], v[{104+4*ks}:{107+4*ks}], v[{84+4*ks}:{87+4*ks}], v[128:131]")
    e("s_nop 7")
    stamp(4)
    e("s_lshl_b32 s25, s18, 11")
    e("v_lshlrev_b32 v4, 8, v3")
    e("v_lshlrev_b32 v6, 2, v2")
    e("v_add_u32 v4, v4, v6")
    e("v_add_u32 v4, s25, v4")
    for mat in range(2):
        for i in range(4):
            e(f"ds_write_b32 v4, v{124+4*mat+i} offset:{K3_RED+1024*mat+64*i}")
    e("s_waitcnt lgkmcnt(0)")
    e("s_barrier")
    e("s_cmp_ge_u32 s18, 2")
    e("s_cbranch_scc1 K3_GUDONE")
    e("v_lshlrev_b32 v4, 2, v0")
    for w in range(4):
        e(f"ds_read_b32 v{8+w}, v4 offset:{K3_RED+2048*w}")
        e(f"ds_read_b32 v{12+w}, v4 offset:{K3_RED+2048*w+1024}")
    e("s_waitcnt lgkmcnt(0)")
    e("v_add_f32 v8, v8, v9")
    e("v_add_f32 v10, v10, v11")
    e("v_add_f32 v8, v8, v10")
    e("v_add_f32 v12, v12, v13")
    e("v_add_f32 v14, v14, v15")
    e("v_add_f32 v9, v12, v14")
    round_list([8, 9], [10])
    e("v_mul_f32 v10, 0xbfb8aa3b, v8")
    e("v_exp_f32 v10, v10")
    e("s_nop 0")
    e("v_add_f32 v10, 1.0, v10")
    e("v_rcp_f32 v11, v10")
    e("s_nop 0")
    e("v_mul_f32 v12, v8, v11")
    e("v_fma_f32 v13, -v12, v10, v8")
    e("v_fma_f32 v12, v13, v11, v12")
    e("v_cvt_pk_bf16_f32 v13, v12, v12")
    e("v_lshlrev_b32 v12, 16, v13")
    e("v_mul_f32 v12, v12, v9")
    e("v_cvt_pk_bf16_f32 v13, v12, v12")
    e("v_lshrrev_b32 v5, 4, v0")
    e("s_movk_i32 s20, 3456")
    e("v_mul_lo_u32 v5, v5, s20")
    e("v_and_b32 v6, 15, v0")
    e("v_lshlrev_b32 v6, 1, v6")
    e("v_add_u32 v5, v5, v6")
    e("v_add_u32 v5, s21, v5")
    e("buffer_store_short v13, v5, s[56:59], 0 offen sc0 sc1")
    e("s_waitcnt vmcnt(0)")
    e("K3_GUDONE:")
    stamp(5)
    e("s_barrier")
    e("s_cmp_lg_u32 s18, 0")
    e("s_cbranch_scc1 K3_WAITWG")
    e("v_mov_b32 v8, 1")
    e("v_mov_b32 v9, 0")
    e("v_cmp_eq_u32 vcc, 0, v1")
    e("s_and_saveexec_b64 s[30:31], vcc")
    e("buffer_atomic_add v8, v9, s[72:75], 0 offen sc1")
    e("s_mov_b64 exec, s[30:31]")
    e("s_cmp_ge_u32 s2, 40")
    e("s_cbranch_scc1 K3_END")
    e("K3_POLL:")
    e("buffer_load_dword v10, v9, s[72:75], 0 offen sc0 sc1")
    e("s_waitcnt vmcnt(0)")
    e("v_readfirstlane_b32 s26, v10")
    e("s_nop 3")
    e(f"s_cmp_ge_u32 s26, {NWG3}")
    e("s_cbranch_scc1 K3_WAITWG")
    e("s_sleep 1")
    e("s_branch K3_POLL")
    e("K3_WAITWG:")
    stamp(6)
    e("s_cmp_ge_u32 s2, 40")
    e("s_cbranch_scc1 K3_END")
    e("s_barrier")
    e("v_and_b32 v21, 7, v1")
    e("s_movk_i32 s20, 3456")
    e("v_mul_lo_u32 v22, v21, s20")
    e("v_lshlrev_b32 v23, 4, v3")
    e("v_add_u32 v22, v22, v23")
    e("s_lshl_b32 s29, s27, 6")
    e("v_add_u32 v22, s29, v22")
    for ks in range(14):
        e(f"buffer_load_dwordx4 v[{64+4*ks}:{67+4*ks}], v22, s[56:59], 0 offen offset:{64*ks} sc0 sc1")
    for i in range(4):
        e(f"v_mov_b32 v{124+i}, 0")
    for ks in range(14):
        if ks == 13:
            e("s_cmp_ge_u32 s18, 2")
            e("s_cbranch_scc1 K3_P2DONE")
        e(f"s_waitcnt vmcnt({13-ks})")
        e(f"v_mfma_f32_16x16x32_bf16 v[124:127], v[{64+4*ks}:{67+4*ks}], v[{136+4*ks}:{139+4*ks}], v[124:127]")
    e("K3_P2DONE:")
    e("s_nop 7")
    stamp(7)
    e("s_lshl_b32 s25, s18, 10")
    e("v_lshlrev_b32 v4, 8, v3")
    e("v_lshlrev_b32 v6, 2, v2")
    e("v_add_u32 v4, v4, v6")
    e("v_add_u32 v4, s25, v4")
    for i in range(4):
        e(f"ds_write_b32 v4, v{124+i} offset:{K3_RED+64*i}")
    e("s_waitcnt lgkmcnt(0)")
    e("s_barrier")
    e("s_cmp_ge_u32 s18, 2")
    e("s_cbranch_scc1 K3_END")
    e("v_lshlrev_b32 v4, 2, v0")
    for w in range(4):
        e(f"ds_read_b32 v{8+w}, v4 offset:{K3_RED+1024*w}")
    e("v_lshrrev_b32 v24, 11, v60")
    e("v_and_b32 v25, 0x7fff, v24")
    e("v_xor_b32 v26, 0xffff, v24")
    e("v_cmp_lt_u32 vcc, 0x7fff, v24")
    e("s_nop 1")
    e("v_cndmask_b32 v24, v26, v25, vcc")
    e("v_lshlrev_b32 v24, 16, v24")
    e("v_mul_f32 v25, 0xbfb8aa3b, v24")
    e("v_exp_f32 v25, v25")
    e("s_nop 0")
    e("v_add_f32 v25, 1.0, v25")
    e("v_rcp_f32 v26, v25")
    e("s_nop 0")
    e("v_fma_f32 v27, -v26, v25, 1.0")
    e("v_fma_f32 v26, v27, v26, v26")
    e("v_cvt_pk_bf16_f32 v27, v26, v26")
    e("v_lshlrev_b32 v26, 16, v27")
    e("s_waitcnt lgkmcnt(0)")
    e("v_add_f32 v8, v8, v9")
    e("v_add_f32 v10, v10, v11")
    e("v_add_f32 v8, v8, v10")
    e("v_cvt_pk_bf16_f32 v9, v8, v8")
    e("v_lshlrev_b32 v8, 16, v9")
    e("v_mul_f32 v8, v8, v26")
    e("v_cvt_pk_bf16_f32 v9, v8, v8")
    e("v_lshlrev_b32 v8, 16, v9")
    e("v_lshlrev_b32 v62, 16, v62")
    e("v_lshlrev_b32 v63, 16, v63")
    e("v_add_f32 v8, v8, v63")
    e("v_cvt_pk_bf16_f32 v9, v8, v8")
    e("v_lshlrev_b32 v8, 16, v9")
    e("v_add_f32 v8, v8, v62")
    e("v_cvt_pk_bf16_f32 v9, v8, v8")
    e("buffer_store_short v9, v61, s[64:67], 0 offen")
    if "stamp3" in EXP:
        e("s_waitcnt vmcnt(0)")
        e("s_memtime s[92:93]")
        e("s_waitcnt lgkmcnt(0)")
        e("s_cmp_lg_u32 s2, 5"); e("s_cbranch_scc1 K3_END")
        e("s_cmp_lg_u32 s18, 0"); e("s_cbranch_scc1 K3_END")
        for i in range(8):
            e(f"s_sub_u32 s{78+2*i}, s{78+2*i}, s76")
            e(f"v_mov_b32 v{12+i}, s{78+2*i}")
        e("v_mov_b32 v10, 64")
        e("buffer_store_dwordx4 v[12:15], v10, s[72:75], 0 offen")
        e("buffer_store_dwordx4 v[16:19], v10, s[72:75], 0 offen offset:16")
    e("K3_END:")
    e("s_endpgm")
    kernel_desc(name, 192)

def main():
    hdr = open(OUT0 + ".ref").read().split("; Override launch geometry")[0]
    e(hdr.rstrip("\n"))
    e(f"; @launch kernel=kvt_kernel grid=(320,1,1) block=(256,1,1) lds={K0_LDS}")
    e(f"; @launch kernel=conv_kernel grid=(1055,1,1) block=(128,1,1) lds={K1_LDS}")
    e(f"; @launch kernel=rows_kernel grid=(256,1,1) block=(512,1,1) lds={K2_LDS}")
    e(f"; @launch kernel=ffn_kernel grid=(108,1,1) block=(256,1,1) lds={K3_LDS}")
    if "nop4" in EXP:
        for i in range(4):
            e(f"; @launch kernel=nop_kernel grid=(1,1,1) block=(64,1,1) lds=0")
    e('.amdgcn_target "amdgcn-amd-amdhsa--gfx950"')
    e(".text")
    if "nop4" in EXP:
        kernel_header("nop_kernel"); e("s_endpgm"); kernel_desc("nop_kernel", 8)
    k0(); k1(); k2(); k3()
    e('.section .rodata,"a"')
    for k in KD:
        e(k)
    open(OUT, "w").write("\n".join(L) + "\n")

main()
```

```python
import sys, os
EXP = os.environ.get("EXP", "")

NAME = "sequential_preLN__ssm_conv_h3__moe_arch_mod__prompt"
OUT0 = "cdna_kernels/%s.s" % NAME
OUT = os.environ.get("OUT", OUT0)

L = []
def e(s=""):
    L.append(s)

S_, D_, F_ = 2048, 640, 1728
ROWB = D_ * 2
TB = S_ * ROWB
WS_Z = 0
WS_H = TB
WS_HN = 2 * TB
WS_RK = 3 * TB
WS_GU = WS_RK + 8192
WS_TOP = WS_GU + 32768
WS_KVT = WS_TOP + 4096
WS_WT1 = WS_KVT + TB
WS_WT2 = WS_WT1 + 4423680
WS_SIZE = 268435456

def srd(sd, sb, nbytes, add=0):
    if add:
        e(f"s_add_u32 s{sd}, s{sb}, {add}")
        e(f"s_addc_u32 s{sd+1}, s{sb+1}, 0")
    else:
        e(f"s_mov_b32 s{sd}, s{sb}")
        e(f"s_mov_b32 s{sd+1}, s{sb+1}")
    e(f"s_mov_b32 s{sd+2}, {nbytes}")
    e(f"s_mov_b32 s{sd+3}, 0x00020000")

def kernel_header(name):
    e(f".globl {name}")
    e(".p2align 8")
    e(f".type {name},@function")
    e(f"{name}:")

KD = []
def kernel_desc(name, vgpr, sgpr=102):
    acc = (vgpr + 3) // 4 * 4
    KD.append(f""".p2align 6
.amdhsa_kernel {name}
  .amdhsa_next_free_vgpr {vgpr}
  .amdhsa_next_free_sgpr {sgpr}
  .amdhsa_accum_offset {acc}
  .amdhsa_group_segment_fixed_size 0
  .amdhsa_kernarg_size 112
  .amdhsa_user_sgpr_count 2
  .amdhsa_user_sgpr_kernarg_segment_ptr 1
  .amdhsa_system_sgpr_workgroup_id_x 1
.end_amdhsa_kernel""")

def round_list(regs, tmp):
    n = len(regs)
    assert n % 2 == 0
    for i in range(0, n, 2):
        e(f"v_cvt_pk_bf16_f32 v{tmp[i//2]}, v{regs[i]}, v{regs[i+1]}")
    for i in range(0, n, 2):
        e(f"v_lshlrev_b32 v{regs[i]}, 16, v{tmp[i//2]}")
        e(f"v_and_b32 v{regs[i+1]}, 0xffff0000, v{tmp[i//2]}")

def wave_reduce(op, v, vt, sdst):
    e("s_nop 1")
    e(f"{op}_dpp v{v}, v{v}, v{v} quad_perm:[1,0,3,2] row_mask:0xf bank_mask:0xf")
    e("s_nop 1")
    e(f"{op}_dpp v{v}, v{v}, v{v} quad_perm:[2,3,0,1] row_mask:0xf bank_mask:0xf")
    e("s_nop 1")
    e(f"{op}_dpp v{v}, v{v}, v{v} row_half_mirror row_mask:0xf bank_mask:0xf")
    e("s_nop 1")
    e(f"{op}_dpp v{v}, v{v}, v{v} row_mirror row_mask:0xf bank_mask:0xf")
    e("s_nop 1")
    e(f"{op}_dpp v{v}, v{v}, v{v} row_bcast:15 row_mask:0xa bank_mask:0xf")
    e("s_nop 1")
    e(f"{op}_dpp v{v}, v{v}, v{v} row_bcast:31 row_mask:0xc bank_mask:0xf")
    e("s_nop 1")
    e(f"v_readlane_b32 s{sdst}, v{v}, 63")
    e("s_nop 3")

K0_RS = 144
K0_LDS = 64 * K0_RS

def k0():
    name = "kvt_kernel"
    kernel_header(name)
    e("s_cmp_ge_u32 s2, 320")
    e("s_cbranch_scc1 K0_END")
    e("s_load_dwordx4 s[4:7], s[0:1], 8")
    e("s_load_dwordx2 s[8:9], s[0:1], 24")
    e("s_load_dwordx2 s[14:15], s[0:1], 104")
    e("s_mul_hi_u32 s16, s2, 0x1999999a")
    e("s_mul_i32 s17, s16, 10")
    e("s_sub_u32 s17, s2, s17")
    e("v_and_b32 v1, 7, v0")
    e("v_lshrrev_b32 v2, 3, v0")
    e("s_waitcnt lgkmcnt(0)")
    srd(40, 4, TB)
    srd(44, 6, TB)
    srd(48, 8, D_ * 8)
    srd(52, 14, TB, WS_KVT)
    e("s_lshl_b32 s18, s17, 9")
    e("v_lshlrev_b32 v3, 6, v1")
    e("v_add_u32 v3, s18, v3")
    for i in range(4):
        e(f"buffer_load_dwordx4 v[{8+4*i}:{11+4*i}], v3, s[48:51], 0 offen offset:{16*i}")
    e("s_lshl_b32 s19, s16, 6")
    e("v_lshlrev_b32 v4, 1, v2")
    e("v_add_u32 v4, s19, v4")
    e("s_movk_i32 s20, 1280")
    e("v_mul_lo_u32 v4, v4, s20")
    e("s_lshl_b32 s21, s17, 7")
    e("v_lshlrev_b32 v5, 4, v1")
    e("v_add_u32 v4, v4, v5")
    e("v_add_u32 v4, s21, v4")
    e("v_subrev_u32 v5, 3840, v4")
    KR = 24
    VR = 44
    for r in range(3):
        e(f"buffer_load_dwordx4 v[{KR+4*r}:{KR+4*r+3}], v5, s[40:43], 0 offen offset:{1280*r}")
    for r in range(2):
        e(f"buffer_load_dwordx4 v[{KR+12+4*r}:{KR+12+4*r+3}], v4, s[40:43], 0 offen offset:{1280*r}")
    for r in range(2):
        e(f"buffer_load_dwordx4 v[{VR+4*r}:{VR+4*r+3}], v4, s[44:47], 0 offen offset:{1280*r}")
    e(f"s_movk_i32 s22, {8*K0_RS}")
    e("v_mul_lo_u32 v6, v1, s22")
    e("v_lshlrev_b32 v7, 2, v2")
    e("v_sub_u32 v7, 124, v7")
    e("v_add_u32 v6, v6, v7")
    e("s_waitcnt vmcnt(0)")
    KF = list(range(64, 74))
    WF = list(range(74, 82))
    T = list(range(82, 86))
    U = list(range(86, 90))
    TMP = [90, 91]
    for p in range(4):
        for r in range(5):
            e(f"v_lshlrev_b32 v{KF[r]}, 16, v{KR+4*r+p}")
            e(f"v_and_b32 v{KF[5+r]}, 0xffff0000, v{KR+4*r+p}")
        for h in range(2):
            c = 2 * p + h
            e(f"v_lshlrev_b32 v{WF[4*h+0]}, 16, v{8+2*c}")
            e(f"v_and_b32 v{WF[4*h+1]}, 0xffff0000, v{8+2*c}")
            e(f"v_lshlrev_b32 v{WF[4*h+2]}, 16, v{8+2*c+1}")
            e(f"v_and_b32 v{WF[4*h+3]}, 0xffff0000, v{8+2*c+1}")
        for h in range(2):
            for r in range(2):
                e(f"v_mul_f32 v{T[2*h+r]}, v{WF[4*h+3]}, v{KF[5*h+r]}")
        round_list(T, TMP)
        for j in (2, 1, 0):
            for h in range(2):
                for r in range(2):
                    e(f"v_mul_f32 v{U[2*h+r]}, v{WF[4*h+j]}, v{KF[5*h+r+3-j]}")
            round_list(U, TMP)
            for q in range(4):
                e(f"v_add_f32 v{T[q]}, v{T[q]}, v{U[q]}")
            round_list(T, TMP)
        for r in range(2):
            e(f"v_lshlrev_b32 v{U[r]}, 16, v{VR+4*r+p}")
            e(f"v_and_b32 v{U[2+r]}, 0xffff0000, v{VR+4*r+p}")
        for q in range(4):
            e(f"v_mul_f32 v{T[q]}, v{T[q]}, v{U[q]}")
        for h in range(2):
            e(f"v_cvt_pk_bf16_f32 v{TMP[h]}, v{T[2*h+1]}, v{T[2*h]}")
            e(f"ds_write_b32 v6, v{TMP[h]} offset:{(2*p+h)*K0_RS}")
    e("s_waitcnt lgkmcnt(0)")
    e("s_barrier")
    e(f"s_movk_i32 s22, {K0_RS}")
    e("v_mul_lo_u32 v6, v2, s22")
    e("v_lshlrev_b32 v7, 4, v1")
    e("v_add_u32 v6, v6, v7")
    e("ds_read_b128 v[8:11], v6")
    e(f"ds_read_b128 v[12:15], v6 offset:{32*K0_RS}")
    e("s_lshl_b32 s18, s17, 18")
    e("s_lshl_b32 s19, s16, 7")
    e("s_sub_u32 s19, 3968, s19")
    e("s_add_u32 s18, s18, s19")
    e("v_lshlrev_b32 v4, 12, v2")
    e("v_add_u32 v4, v4, v7")
    e("v_add_u32 v4, s18, v4")
    e("s_mov_b32 s23, 0x20000")
    e("s_waitcnt lgkmcnt(0)")
    e("buffer_store_dwordx4 v[8:11], v4, s[52:55], 0 offen")
    e("buffer_store_dwordx4 v[12:15], v4, s[52:55], s23 offen")
    e("K0_END:")
    e("s_endpgm")
    kernel_desc(name, 96)

KE = 0
KO = 4164
XR = 8288
K1_LDS = 16384

def k1():
    name = "conv_kernel"
    kernel_header(name)
    e("s_cmp_ge_u32 s2, 1055")
    e("s_cbranch_scc1 K1_END")
    e("s_cmp_ge_u32 s2, 640")
    e("s_cbranch_scc1 K1_RELAY")
    if "stamp" in EXP:
        e("s_memtime s[80:81]"); e("s_memrealtime s[82:83]")
    e("s_load_dwordx2 s[10:11], s[0:1], 32")
    e("s_load_dwordx2 s[12:13], s[0:1], 40")
    e("s_load_dwordx2 s[14:15], s[0:1], 104")
    e("v_and_b32 v1, 63, v0")
    e("v_lshrrev_b32 v2, 6, v0")
    e("s_lshl_b32 s19, s2, 12")
    e("v_lshlrev_b32 v3, 4, v0")
    e("v_add_u32 v3, s19, v3")
    e("v_subrev_u32 v4, 4, v3")
    e("v_readfirstlane_b32 s18, v2")
    e("s_waitcnt lgkmcnt(0)")
    if "stamp" in EXP:
        e("s_memtime s[70:71]")
    e("s_and_b32 s17, s2, 0xfffffffe")
    e("s_lshl_b32 s17, s17, 1")
    e("s_add_u32 s12, s12, s17")
    e("s_addc_u32 s13, s13, 0")
    e("s_load_dword s32, s[12:13], 0")
    srd(48, 10, D_ * S_ * 2)
    srd(44, 14, TB, WS_KVT)
    srd(52, 14, TB, WS_Z)
    for r in range(2):
        e(f"buffer_load_dwordx4 v[{20+4*r}:{23+4*r}], v3, s[48:51], 0 offen offset:{2048*r}")
    for r in range(2):
        e(f"buffer_load_dword v{28+r}, v4, s[48:51], 0 offen offset:{2048*r}")
    for r in range(2):
        e(f"buffer_load_dwordx4 v[{32+4*r}:{35+4*r}], v3, s[44:47], 0 offen offset:{2048*r}")
    e("v_mov_b32 v8, 0")
    e("v_mov_b32 v9, 0")
    e("v_mov_b32 v10, 0")
    e("v_mov_b32 v11, 0")
    e("v_lshlrev_b32 v12, 4, v0")
    e("v_cmp_gt_u32 vcc, 30, v0")
    e("s_and_saveexec_b64 s[38:39], vcc")
    e(f"ds_write_b128 v12, v[8:11] offset:{XR+4096}")
    e("s_mov_b64 exec, s[38:39]")
    e("v_lshlrev_b32 v13, 2, v0")
    e("v_cmp_gt_u32 vcc, 8, v0")
    e("s_and_saveexec_b64 s[38:39], vcc")
    e(f"ds_write_b32 v13, v8 offset:{KE}")
    e("s_mov_b64 exec, s[38:39]")
    e("v_cmp_gt_u32 vcc, 7, v0")
    e("s_and_saveexec_b64 s[38:39], vcc")
    e(f"ds_write_b32 v13, v8 offset:{KO}")
    e("s_mov_b64 exec, s[38:39]")
    e("v_and_b32 v2, 15, v1")
    e("v_lshrrev_b32 v3, 4, v1")
    e("v_lshlrev_b32 v4, 3, v3")
    e("v_add_u32 v4, v4, v2")
    e("v_lshlrev_b32 v4, 1, v4")
    e("v_and_b32 v5, 1, v2")
    e("v_cmp_eq_u32 vcc, 1, v5")
    e(f"v_mov_b32 v6, {KO}")
    e(f"v_mov_b32 v7, {KE+2}")
    e("v_cndmask_b32 v5, v6, v7, vcc")
    e("s_lshl_b32 s20, s18, 8")
    e("v_add_u32 v40, v4, v5")
    e("v_add_u32 v40, s20, v40")
    e("v_add_u32 v41, 1024, v40")
    e("v_add_u32 v42, 2048, v40")
    e("v_add_u32 v43, 3072, v40")
    e("v_lshlrev_b32 v44, 5, v2")
    e("v_lshlrev_b32 v13, 4, v3")
    e(f"v_sub_u32 v44, {XR+480}, v44")
    e("v_add_u32 v44, v44, v13")
    e("v_add_u32 v44, s20, v44")
    ACC = 128
    for i in range(32):
        e(f"v_mov_b32 v{ACC+i}, 0")
    if "stamp" in EXP:
        e("s_memtime s[72:73]")
    e("s_waitcnt vmcnt(2)")
    if "stamp" in EXP:
        e("s_memtime s[74:75]")
    e("v_cmp_eq_u32 vcc, 0, v0")
    e("s_nop 1")
    e("v_cndmask_b32 v28, v28, v8, vcc")
    for r in range(2):
        b = 20 + 4 * r
        e(f"ds_write_b128 v12, v[{b}:{b+3}] offset:{KE+32+2048*r}")
        e(f"v_alignbit_b32 v16, v{b}, v{28+r}, 16")
        e(f"v_alignbit_b32 v17, v{b+1}, v{b}, 16")
        e(f"v_alignbit_b32 v18, v{b+2}, v{b+1}, 16")
        e(f"v_alignbit_b32 v19, v{b+3}, v{b+2}, 16")
        e(f"ds_write_b128 v12, v[16:19] offset:{KO+28+2048*r}")
        e("s_nop 1")
    e("s_waitcnt vmcnt(0)")
    for r in range(2):
        e(f"ds_write_b128 v12, v[{32+4*r}:{35+4*r}] offset:{XR+2048*r}")
    e("s_waitcnt lgkmcnt(0)")
    e("s_and_b32 s35, s2, 1")
    e("s_cmp_eq_u32 s35, 0")
    e("s_cbranch_scc1 K1_DLO")
    e("s_and_b32 s34, s32, 0xffff0000")
    e("s_branch K1_DDONE")
    e("K1_DLO:")
    e("s_lshl_b32 s34, s32, 16")
    e("K1_DDONE:")
    e("s_barrier")
    if "stamp" in EXP:
        e("s_memtime s[84:85]")
    SETS = [(64, 96), (160, 192)]
    def reads(c0, st):
        A, B = SETS[st]
        out = []
        for t in range(8):
            ar = 40 + t // 2
            off = (64 * c0 + 512 * (t & 1)) // 4
            out.append(f"ds_read2_b32 v[{A+4*t}:{A+4*t+1}], v{ar} offset0:{off} offset1:{off+1}")
            out.append(f"ds_read2_b32 v[{A+4*t+2}:{A+4*t+3}], v{ar} offset0:{off+2} offset1:{off+3}")
        for wp in range(8):
            out.append(f"ds_read_b128 v[{B+4*wp}:{B+4*wp+3}], v44 offset:{64*c0+512*(7-wp)}")
        return out
    for x in reads(0, 0):
        e(x)
    NC = 4
    for c0 in range(NC):
        st = c0 & 1
        A, B = SETS[st]
        e("s_waitcnt lgkmcnt(0)")
        nxt = reads(c0 + 1, st ^ 1) if c0 < NC - 1 else []
        for j in range(8):
            for t in range(j + 1):
                a = A + 4 * t
                b = B + 4 * (j - t)
                d = ACC + 4 * j
                e(f"v_mfma_f32_16x16x32_bf16 v[{d}:{d+3}], v[{a}:{a+3}], v[{b}:{b+3}], v[{d}:{d+3}]")
                for _ in range(2):
                    if nxt:
                        e(nxt.pop(0))
    e("s_nop 15")
    if "stamp" in EXP:
        e("s_memtime s[86:87]")
    e("s_barrier")
    e("v_lshlrev_b32 v5, 2, v1")
    e("s_xor_b32 s21, s18, 1")
    e("s_lshl_b32 s21, s21, 12")
    e("v_add_u32 v6, s21, v5")
    e("s_lshl_b32 s22, s18, 12")
    e("v_add_u32 v7, s22, v5")
    e("s_cmp_eq_u32 s18, 0")
    e("s_cbranch_scc1 K1_W0")
    for q in range(16):
        e(f"ds_write_b32 v6, v{ACC+q} offset:{256*q}")
    for q in range(16):
        e(f"v_mov_b32 v{ACC+q}, v{ACC+16+q}")
    e("s_branch K1_XDONE")
    e("K1_W0:")
    for q in range(16):
        e(f"ds_write_b32 v6, v{ACC+16+q} offset:{256*q}")
    e("K1_XDONE:")
    e("s_waitcnt lgkmcnt(0)")
    e("s_barrier")
    for q in range(16):
        e(f"ds_read_b32 v{64+q}, v7 offset:{256*q}")
    e("v_lshlrev_b32 v4, 5, v2")
    e("v_lshlrev_b32 v5, 3, v3")
    e("v_add_u32 v4, v4, v5")
    e("s_lshl_b32 s23, s18, 11")
    e(f"v_sub_u32 v8, {XR+4088-1536}, v4")
    e("v_subrev_u32 v8, s23, v8")
    for j4 in range(4):
        e(f"ds_read_b64 v[{80+2*j4}:{81+2*j4}], v8 offset:{512*(3-j4)}")
    e("v_add_u32 v9, s19, v4")
    e("v_add_u32 v9, s23, v9")
    e("s_waitcnt lgkmcnt(0)")
    for j4 in range(4):
        a = ACC + 4 * j4
        Y = [a, a + 1, a + 2, a + 3]
        for i in range(4):
            e(f"v_add_f32 v{Y[i]}, v{Y[i]}, v{64+4*j4+i}")
        round_list(Y, [20, 21])
        e(f"v_and_b32 v24, 0xffff0000, v{81+2*j4}")
        e(f"v_lshlrev_b32 v25, 16, v{81+2*j4}")
        e(f"v_and_b32 v26, 0xffff0000, v{80+2*j4}")
        e(f"v_lshlrev_b32 v27, 16, v{80+2*j4}")
        for i in range(4):
            e(f"v_mul_f32 v{24+i}, s34, v{24+i}")
        round_list([24, 25, 26, 27], [20, 21])
        for i in range(4):
            e(f"v_add_f32 v{24+i}, v{24+i}, v{Y[i]}")
        e(f"v_cvt_pk_bf16_f32 v{96+2*j4}, v24, v25")
        e(f"v_cvt_pk_bf16_f32 v{97+2*j4}, v26, v27")
        e(f"buffer_store_dwordx2 v[{96+2*j4}:{97+2*j4}], v9, s[52:55], 0 offen offset:{512*j4}")
    if "stamp" in EXP:
        e("s_waitcnt vmcnt(0)")
        e("s_memtime s[88:89]"); e("s_memrealtime s[90:91]")
        e("s_load_dwordx2 s[92:93], s[0:1], 96")
        e("s_waitcnt lgkmcnt(0)")
        srd(96, 92, 256)
        e("s_cmp_lg_u32 s2, 300"); e("s_cbranch_scc1 K1_END")
        e("s_cmp_lg_u32 s18, 0"); e("s_cbranch_scc1 K1_END")
        e("s_sub_u32 s84, s84, s80"); e("s_sub_u32 s86, s86, s80"); e("s_sub_u32 s88, s88, s80"); e("s_sub_u32 s90, s90, s82")
        e("s_sub_u32 s70, s70, s80"); e("s_sub_u32 s72, s72, s80"); e("s_sub_u32 s74, s74, s80")
        for i, r in enumerate([84, 86, 88, 90, 70, 72, 74, 74]):
            e(f"v_mov_b32 v{12+i}, s{r}")
        e("v_mov_b32 v10, 0")
        e("buffer_store_dwordx4 v[12:15], v10, s[96:99], 0 offen")
        e("buffer_store_dwordx4 v[16:19], v10, s[96:99], 0 offen offset:16")
    e("s_endpgm")
    e("K1_RELAY:")
    e("s_load_dwordx4 s[4:7], s[0:1], 64")
    e("s_load_dwordx2 s[8:9], s[0:1], 80")
    e("s_load_dwordx2 s[14:15], s[0:1], 104")
    e("v_and_b32 v1, 63, v0")
    e("v_lshrrev_b32 v2, 6, v0")
    e("s_mov_b32 s30, 0x05040100")
    e("s_mov_b32 s31, 0x07060302")
    e("v_readfirstlane_b32 s18, v2")
    e("s_sub_u32 s16, s2, 640")
    e("s_lshl_b32 s16, s16, 1")
    e("s_nop 2")
    e("s_add_u32 s16, s16, s18")
    e("v_lshrrev_b32 v3, 3, v1")
    e("v_bfe_u32 v4, v1, 1, 2")
    e("v_and_b32 v5, 1, v1")
    e("s_cmp_ge_u32 s16, 560")
    e("s_cbranch_scc1 K1_RDOWN")
    e("s_cmp_ge_u32 s16, 280")
    e("s_cselect_b32 s17, 1, 0")
    e("s_mul_i32 s19, s17, 280")
    e("s_sub_u32 s16, s16, s19")
    e("s_mul_hi_u32 s20, s16, 306783379")
    e("s_mul_i32 s19, s20, 14")
    e("s_sub_u32 s21, s16, s19")
    e("s_waitcnt lgkmcnt(0)")
    e("s_cmp_eq_u32 s17, 0")
    e("s_cselect_b32 s4, s4, s6")
    e("s_cselect_b32 s5, s5, s7")
    srd(40, 4, D_ * F_ * 2)
    srd(44, 14, 4423680, WS_WT1)
    e("s_movk_i32 s22, 3456")
    e("s_movk_i32 s23, 108")
    e("s_mul_i32 s24, s17, 20")
    e("s_add_u32 s24, s24, s20")
    e("s_lshl_b32 s24, s24, 10")
    e("s_mov_b32 s25, 40960")
    e("s_branch K1_RGO")
    e("K1_RDOWN:")
    e("s_sub_u32 s16, s16, 560")
    e("s_mul_hi_u32 s20, s16, 858993460")
    e("s_mul_i32 s19, s20, 5")
    e("s_sub_u32 s21, s16, s19")
    e("s_waitcnt lgkmcnt(0)")
    srd(40, 8, D_ * F_ * 2)
    srd(44, 14, 2211840, WS_WT2)
    e("s_movk_i32 s22, 1280")
    e("s_movk_i32 s23, 40")
    e("s_lshl_b32 s24, s20, 10")
    e("s_mov_b32 s25, 55296")
    e("K1_RGO:")
    e("s_lshl_b32 s26, s20, 5")
    e("v_lshlrev_b32 v6, 3, v4")
    e("v_add_u32 v6, s26, v6")
    e("v_mul_lo_u32 v6, v6, s22")
    e("s_lshl_b32 s27, s21, 8")
    e("v_lshlrev_b32 v7, 5, v3")
    e("v_add_u32 v6, v6, v7")
    e("v_lshlrev_b32 v7, 4, v5")
    e("v_add_u32 v6, v6, v7")
    e("v_add_u32 v6, s27, v6")
    e("s_mov_b32 s28, 0")
    for i in range(8):
        e(f"buffer_load_dwordx4 v[{8+4*i}:{11+4*i}], v6, s[40:43], s28 offen")
        if i < 7:
            e("s_add_u32 s28, s28, s22")
    e("s_lshl_b32 s29, s18, 13")
    e("v_lshlrev_b32 v72, 7, v1")
    e("v_add_u32 v72, s29, v72")
    e("v_and_b32 v73, 7, v1")
    e("v_lshlrev_b32 v73, 4, v73")
    e("v_lshlrev_b32 v74, 7, v3")
    e("v_lshlrev_b32 v75, 4, v3")
    e("v_xor_b32 v75, v75, v73")
    e("v_add_u32 v74, v74, v75")
    e("v_add_u32 v74, s29, v74")
    e("s_waitcnt vmcnt(0)")
    for c in range(8):
        d, h = c >> 1, c & 1
        for p in range(4):
            e(f"v_perm_b32 v{40+4*c+p}, v{8+4*(2*p+1)+d}, v{8+4*(2*p)+d}, s{30+h}")
    for c in range(8):
        e(f"v_xor_b32 v75, {16*c}, v73")
        e("v_add_u32 v75, v72, v75")
        e(f"ds_write_b128 v75, v[{40+4*c}:{43+4*c}]")
    e("s_waitcnt lgkmcnt(0)")
    for q in range(8):
        e(f"ds_read_b128 v[{8+4*q}:{11+4*q}], v74 offset:{1024*q}")
    e("s_lshl_b32 s26, s21, 3")
    e("s_mul_i32 s27, s26, s25")
    e("s_add_u32 s27, s27, s24")
    e("v_lshlrev_b32 v6, 4, v1")
    e("s_waitcnt lgkmcnt(0)")
    for q in range(8):
        e(f"s_cmp_ge_u32 s26, s23")
        e("s_cbranch_scc1 K1_END")
        e(f"buffer_store_dwordx4 v[{8+4*q}:{11+4*q}], v6, s[44:47], s27 offen")
        e("s_add_u32 s26, s26, 1")
        e("s_add_u32 s27, s27, s25")
    e("K1_END:")
    e("s_endpgm")
    kernel_desc(name, 224)

def unpack10(src4, src1, dst):
    for i in range(4):
        e(f"v_lshlrev_b32 v{dst[2*i]}, 16, v{src4+i}")
        e(f"v_and_b32 v{dst[2*i+1]}, 0xffff0000, v{src4+i}")
    e(f"v_lshlrev_b32 v{dst[8]}, 16, v{src1}")
    e(f"v_and_b32 v{dst[9]}, 0xffff0000, v{src1}")

def layernorm(X, OUTR, TMP, sc):
    e(f"v_add_f32 v60, v{X[0]}, v{X[1]}")
    for i in range(2, 10):
        e(f"v_add_f32 v60, v60, v{X[i]}")
    wave_reduce("v_add_f32", 60, None, sc)
    e(f"v_mov_b32 v61, 0x3acccccd")
    e(f"v_mul_f32 v61, s{sc}, v61")
    e(f"v_sub_f32 v62, v{X[0]}, v61")
    e("v_mul_f32 v60, v62, v62")
    for i in range(1, 10):
        e(f"v_sub_f32 v62, v{X[i]}, v61")
        e("v_fmac_f32 v60, v62, v62")
    wave_reduce("v_add_f32", 60, None, sc + 1)
    e(f"v_mov_b32 v62, 0x3acccccd")
    e(f"v_mul_f32 v62, s{sc+1}, v62")
    e("v_cvt_pk_bf16_f32 v63, v61, v62")
    e("v_lshlrev_b32 v61, 16, v63")
    e("v_and_b32 v62, 0xffff0000, v63")
    e("v_add_f32 v62, 0x3727c5ac, v62")
    e("v_cvt_pk_bf16_f32 v63, v62, v62")
    e("v_lshlrev_b32 v62, 16, v63")
    e("v_sqrt_f32 v62, v62")
    e("s_nop 0")
    e("v_cvt_pk_bf16_f32 v63, v62, v62")
    e("v_lshlrev_b32 v62, 16, v63")
    e("v_rcp_f32 v63, v62")
    e("s_nop 0")
    for i in range(10):
        e(f"v_sub_f32 v{OUTR[i]}, v{X[i]}, v61")
    round_list(OUTR, TMP)
    for i in range(10):
        e(f"v_mul_f32 v60, v{OUTR[i]}, v63")
        e(f"v_fma_f32 v{OUTR[i]}, -v60, v62, v{OUTR[i]}")
        e(f"v_fma_f32 v{OUTR[i]}, v{OUTR[i]}, v63, v60")
    round_list(OUTR, TMP)

def pack_store(R, P, voff4, voff1, srdr):
    for i in range(5):
        e(f"v_cvt_pk_bf16_f32 v{P+i}, v{R[2*i]}, v{R[2*i+1]}")
    e(f"buffer_store_dwordx4 v[{P}:{P+3}], v{voff4}, s[{srdr}:{srdr+3}], 0 offen")
    e(f"buffer_store_dword v{P+4}, v{voff1}, s[{srdr}:{srdr+3}], 0 offen")

K2_LDS = 8 * 1280

def k2():
    name = "rows_kernel"
    kernel_header(name)
    e("s_cmp_ge_u32 s2, 256")
    e("s_cbranch_scc1 K2_END")
    e("s_load_dwordx2 s[4:5], s[0:1], 0")
    e("s_load_dwordx2 s[6:7], s[0:1], 56")
    e("s_load_dwordx2 s[8:9], s[0:1], 88")
    e("s_load_dwordx2 s[14:15], s[0:1], 104")
    e("s_and_b32 s16, s2, 7")
    e("s_lshl_b32 s16, s16, 5")
    e("s_lshr_b32 s17, s2, 3")
    e("s_add_u32 s16, s16, s17")
    e("v_and_b32 v1, 63, v0")
    e("v_lshrrev_b32 v2, 6, v0")
    e("s_lshl_b32 s18, s16, 3")
    e("v_add_u32 v2, s18, v2")
    e("s_movk_i32 s17, 1280")
    e("v_mul_lo_u32 v3, v2, s17")
    e("v_lshlrev_b32 v4, 4, v1")
    e("v_lshlrev_b32 v5, 2, v1")
    e("v_add_u32 v5, 1024, v5")
    e("v_add_u32 v6, v3, v4")
    e("v_add_u32 v7, v3, v5")
    e("v_lshlrev_b32 v30, 12, v0")
    e("s_lshl_b32 s19, s16, 4")
    e("v_add_u32 v30, s19, v30")
    e("s_waitcnt lgkmcnt(0)")
    srd(40, 4, TB)
    srd(44, 6, ROWB)
    srd(48, 8, TB)
    srd(52, 14, TB, WS_Z)
    srd(56, 14, TB, WS_H)
    srd(60, 14, TB, WS_HN)
    srd(64, 14, 8192, WS_RK)
    e("s_mov_b32 s20, 0x200000")
    e("buffer_load_dwordx4 v[32:35], v30, s[52:55], 0 offen")
    e("buffer_load_dwordx4 v[36:39], v30, s[52:55], s20 offen")
    e("buffer_load_dwordx4 v[8:11], v6, s[40:43], 0 offen")
    e("buffer_load_dword v12, v7, s[40:43], 0 offen")
    e("buffer_load_dwordx4 v[24:27], v4, s[44:47], 0 offen")
    e("buffer_load_dword v28, v5, s[44:47], 0 offen")
    e("v_lshlrev_b32 v31, 1, v0")
    e("s_waitcnt vmcnt(4)")
    for r in range(8):
        d16 = "_d16_hi" if r & 1 else ""
        e(f"ds_write_b16{d16} v31, v{32+r//2} offset:{1280*r}")
    e("v_cmp_gt_u32 vcc, 128, v0")
    e("s_and_saveexec_b64 s[30:31], vcc")
    for r in range(8):
        d16 = "_d16_hi" if r & 1 else ""
        e(f"ds_write_b16{d16} v31, v{36+r//2} offset:{1280*r+1024}")
    e("s_mov_b64 exec, s[30:31]")
    X = list(range(64, 74))
    QN = list(range(74, 84))
    Z = list(range(84, 94))
    H = list(range(94, 104))
    TMP = list(range(104, 109))
    e("s_waitcnt vmcnt(2)")
    unpack10(8, 12, X)
    e("s_waitcnt lgkmcnt(0)")
    e("s_barrier")
    e("v_lshrrev_b32 v29, 6, v0")
    e("v_mul_lo_u32 v29, v29, s17")
    e("v_add_u32 v31, v29, v4")
    e("v_add_u32 v29, v29, v5")
    e("ds_read_b128 v[16:19], v31")
    e("ds_read_b32 v20, v29")
    layernorm(X, QN, TMP, 20)
    e("s_waitcnt lgkmcnt(0)")
    unpack10(16, 20, Z)
    for i in range(10):
        e(f"v_mul_f32 v{QN[i]}, v{QN[i]}, v{Z[i]}")
    round_list(QN, TMP)
    for i in range(10):
        e(f"v_add_f32 v{H[i]}, v{X[i]}, v{QN[i]}")
    round_list(H, TMP)
    pack_store(H, 112, 6, 7, 56)
    HN = QN
    layernorm(H, HN, TMP, 22)
    pack_store(HN, 120, 6, 7, 60)
    e("s_waitcnt vmcnt(4)")
    W = Z
    unpack10(24, 28, W)
    e(f"v_mul_f32 v60, v{HN[0]}, v{W[0]}")
    for i in range(1, 10):
        e(f"v_fmac_f32 v60, v{HN[i]}, v{W[i]}")
    wave_reduce("v_add_f32", 60, None, 24)
    for i in range(10):
        e(f"v_add_f32 v{X[i]}, v{H[i]}, v{HN[i]}")
    pack_store(X, 128, 6, 7, 48)
    e("v_mov_b32 v60, s24")
    e("v_cvt_pk_bf16_f32 v61, v60, v60")
    e("v_and_b32 v61, 0xffff, v61")
    e("v_xor_b32 v62, 0xffff, v61")
    e("v_or_b32 v63, 0x8000, v61")
    e("v_cmp_gt_u32 vcc, 0x8000, v61")
    e("s_nop 1")
    e("v_cndmask_b32 v61, v62, v63, vcc")
    e("v_lshlrev_b32 v61, 11, v61")
    e("v_sub_u32 v62, 2047, v2")
    e("v_or_b32 v61, v61, v62")
    e("v_lshlrev_b32 v62, 2, v2")
    e("v_cmp_eq_u32 vcc, 0, v1")
    e("s_and_saveexec_b64 s[30:31], vcc")
    e("buffer_store_dword v61, v62, s[64:67], 0 offen")
    e("K2_END:")
    e("s_endpgm")
    kernel_desc(name, 136)

K3_CAND = 0
K3_TOP = 128
K3_RED = 256
K3_GU = K3_RED + 8192
K3_LDS = K3_GU + 28672 + 1024
NWG3 = 108

def stamp(n, tag="stamp3"):
    if tag in EXP:
        e(f"s_memtime s[{76+2*n}:{77+2*n}]")

def k3():
    name = "ffn_kernel"
    kernel_header(name)
    e(f"s_cmp_ge_u32 s2, {NWG3}")
    e("s_cbranch_scc1 K3_END")
    stamp(0)
    e("s_load_dwordx2 s[10:11], s[0:1], 88")
    e("s_load_dwordx4 s[12:15], s[0:1], 96")
    e("v_and_b32 v1, 63, v0")
    e("v_lshrrev_b32 v2, 6, v0")
    e("v_lshlrev_b32 v3, 5, v0")
    e("v_readfirstlane_b32 s18, v2")
    e("s_lshl_b32 s21, s2, 5")
    e("s_waitcnt lgkmcnt(0)")
    srd(52, 14, 8192, WS_RK)
    e("buffer_load_dwordx4 v[8:11], v3, s[52:55], 0 offen")
    e("buffer_load_dwordx4 v[12:15], v3, s[52:55], 0 offen offset:16")
    srd(40, 14, 4423680, WS_WT1)
    srd(60, 14, 2211840, WS_WT2)
    srd(48, 14, TB, WS_HN)
    srd(56, 14, 8 * F_ * 2, WS_GU)
    srd(64, 10, TB)
    srd(68, 14, TB, WS_H)
    srd(72, 12, 256)
    e("s_mul_i32 s19, s2, 40960")
    e("s_mul_i32 s20, s18, 5120")
    e("s_add_u32 s19, s19, s20")
    e("v_lshlrev_b32 v4, 4, v1")
    e("v_add_u32 v4, s19, v4")
    e("s_movk_i32 s22, 20480")
    for ks in range(5):
        if ks < 4:
            e(f"buffer_load_dwordx4 v[{64+4*ks}:{67+4*ks}], v4, s[40:43], 0 offen offset:{1024*ks}")
            e(f"buffer_load_dwordx4 v[{84+4*ks}:{87+4*ks}], v4, s[40:43], s22 offen offset:{1024*ks}")
        else:
            e("v_add_u32 v5, 4096, v4")
            e(f"buffer_load_dwordx4 v[{64+4*ks}:{67+4*ks}], v5, s[40:43], 0 offen")
            e(f"buffer_load_dwordx4 v[{84+4*ks}:{87+4*ks}], v5, s[40:43], s22 offen")
    e("s_mul_i32 s27, s18, 14")
    e("s_cmp_eq_u32 s18, 3")
    e("s_cselect_b32 s28, 1, 0")
    e("s_sub_u32 s27, s27, s28")
    e("s_cmp_ge_u32 s2, 40")
    e("s_cbranch_scc1 K3_NOWD")
    e("s_mul_i32 s19, s2, 55296")
    e("s_lshl_b32 s20, s27, 10")
    e("s_add_u32 s19, s19, s20")
    e("v_lshlrev_b32 v6, 4, v1")
    e("v_add_u32 v6, s19, v6")
    for i in range(14):
        e(f"s_movk_i32 s22, {4096*(i//4)}")
        e(f"buffer_load_dwordx4 v[{136+4*i}:{139+4*i}], v6, s[60:63], s22 offen offset:{1024*(i%4)}")
    e("s_waitcnt vmcnt(24)")
    e("s_branch K3_WDDONE")
    e("K3_NOWD:")
    e("s_waitcnt vmcnt(10)")
    e("K3_WDDONE:")
    stamp(1)
    K = list(range(8, 16))
    e("v_mov_b32 v20, 0")
    for rnd in range(8):
        e(f"v_max3_u32 v16, v{K[0]}, v{K[1]}, v{K[2]}")
        e(f"v_max3_u32 v17, v{K[3]}, v{K[4]}, v{K[5]}")
        e(f"v_max3_u32 v16, v16, v{K[6]}, v{K[7]}")
        e("v_max_u32 v16, v16, v17")
        wave_reduce("v_max_u32", 16, None, 24)
        e(f"v_writelane_b32 v20, s24, {rnd}")
        if rnd < 7:
            for k in K:
                e(f"v_cmp_ne_u32 vcc, s24, v{k}")
                e("s_nop 1")
                e(f"v_cndmask_b32 v{k}, 0, v{k}, vcc")
    e("s_lshl_b32 s23, s18, 5")
    e("v_lshlrev_b32 v21, 2, v1")
    e("v_add_u32 v21, s23, v21")
    e("v_cmp_gt_u32 vcc, 8, v1")
    e("s_and_saveexec_b64 s[30:31], vcc")
    e(f"ds_write_b32 v21, v20 offset:{K3_CAND}")
    e("s_mov_b64 exec, s[30:31]")
    e("s_waitcnt lgkmcnt(0)")
    e("s_barrier")
    e("v_and_b32 v21, 31, v1")
    e("v_lshlrev_b32 v21, 2, v21")
    e(f"ds_read_b32 v22, v21 offset:{K3_CAND}")
    e("v_mov_b32 v23, 0")
    for i in range(8):
        e(f"ds_read_b128 v[{24+4*i}:{27+4*i}], v23 offset:{K3_CAND+16*i}")
    e("s_waitcnt lgkmcnt(0)")
    e("v_mov_b32 v21, 0")
    for i in range(32):
        e(f"v_cmp_gt_u32 vcc, v{24+i}, v22")
        e("s_nop 1")
        e("v_addc_co_u32 v21, vcc, 0, v21, vcc")
    e("v_lshlrev_b32 v23, 2, v21")
    e("v_cmp_gt_u32 vcc, 8, v21")
    e("s_and_saveexec_b64 s[30:31], vcc")
    e(f"ds_write_b32 v23, v22 offset:{K3_TOP}")
    e("s_mov_b64 exec, s[30:31]")
    e("s_waitcnt lgkmcnt(0)")
    e("s_barrier")
    e("v_and_b32 v21, 7, v1")
    e("v_lshlrev_b32 v21, 2, v21")
    e(f"ds_read_b32 v22, v21 offset:{K3_TOP}")
    e("v_lshrrev_b32 v61, 4, v0")
    e("v_and_b32 v61, 7, v61")
    e("v_lshlrev_b32 v61, 2, v61")
    e(f"ds_read_b32 v60, v61 offset:{K3_TOP}")
    e("s_waitcnt lgkmcnt(0)")
    stamp(2)
    e("v_and_b32 v22, 2047, v22")
    e("v_sub_u32 v22, 2047, v22")
    e("s_movk_i32 s20, 1280")
    e("v_mul_lo_u32 v22, v22, s20")
    e("v_lshrrev_b32 v3, 4, v1")
    e("v_lshlrev_b32 v23, 4, v3")
    e("v_add_u32 v22, v22, v23")
    e("s_mul_i32 s19, s18, 320")
    e("v_add_u32 v22, s19, v22")
    for ks in range(5):
        e(f"buffer_load_dwordx4 v[{104+4*ks}:{107+4*ks}], v22, s[48:51], 0 offen offset:{64*ks}")
    e("v_and_b32 v61, 2047, v60")
    e("v_sub_u32 v61, 2047, v61")
    e("v_mul_lo_u32 v61, v61, s20")
    e("v_and_b32 v62, 15, v0")
    e("v_lshlrev_b32 v62, 1, v62")
    e("v_add_u32 v61, v61, v62")
    e("v_add_u32 v61, s21, v61")
    e("buffer_load_ushort v62, v61, s[68:71], 0 offen")
    e("buffer_load_ushort v63, v61, s[48:51], 0 offen")
    e("v_and_b32 v2, 15, v1")
    for i in range(8):
        e(f"v_mov_b32 v{124+i}, 0")
    for ks in range(5):
        e(f"s_waitcnt vmcnt({6-ks})")
        e(f"v_mfma_f32_16x16x32_bf16 v[124:127], v[{104+4*ks}:{107+4*ks}], v[{64+4*ks}:{67+4*ks}], v[124:127]")
        e(f"v_mfma_f32_16x16x32_bf16 v[128:131], v[{104+4*ks}:{107+4*ks}], v[{84+4*ks}:{87+4*ks}], v[128:131]")
    e("s_nop 7")
    stamp(4)
    e("s_lshl_b32 s25, s18, 11")
    e("v_lshlrev_b32 v4, 8, v3")
    e("v_lshlrev_b32 v6, 2, v2")
    e("v_add_u32 v4, v4, v6")
    e("v_add_u32 v4, s25, v4")
    for mat in range(2):
        for i in range(4):
            e(f"ds_write_b32 v4, v{124+4*mat+i} offset:{K3_RED+1024*mat+64*i}")
    e("s_waitcnt lgkmcnt(0)")
    e("s_barrier")
    e("s_cmp_ge_u32 s18, 2")
    e("s_cbranch_scc1 K3_GUDONE")
    e("v_lshlrev_b32 v4, 2, v0")
    for w in range(4):
        e(f"ds_read_b32 v{8+w}, v4 offset:{K3_RED+2048*w}")
        e(f"ds_read_b32 v{12+w}, v4 offset:{K3_RED+2048*w+1024}")
    e("s_waitcnt lgkmcnt(0)")
    e("v_add_f32 v8, v8, v9")
    e("v_add_f32 v10, v10, v11")
    e("v_add_f32 v8, v8, v10")
    e("v_add_f32 v12, v12, v13")
    e("v_add_f32 v14, v14, v15")
    e("v_add_f32 v9, v12, v14")
    round_list([8, 9], [10])
    e("v_mul_f32 v10, 0xbfb8aa3b, v8")
    e("v_exp_f32 v10, v10")
    e("s_nop 0")
    e("v_add_f32 v10, 1.0, v10")
    e("v_rcp_f32 v11, v10")
    e("s_nop 0")
    e("v_mul_f32 v12, v8, v11")
    e("v_fma_f32 v13, -v12, v10, v8")
    e("v_fma_f32 v12, v13, v11, v12")
    e("v_cvt_pk_bf16_f32 v13, v12, v12")
    e("v_lshlrev_b32 v12, 16, v13")
    e("v_mul_f32 v12, v12, v9")
    e("v_cvt_pk_bf16_f32 v13, v12, v12")
    e("v_lshrrev_b32 v5, 4, v0")
    e("s_movk_i32 s20, 3456")
    e("v_mul_lo_u32 v5, v5, s20")
    e("v_and_b32 v6, 15, v0")
    e("v_lshlrev_b32 v6, 1, v6")
    e("v_add_u32 v5, v5, v6")
    e("v_add_u32 v5, s21, v5")
    e("buffer_store_short v13, v5, s[56:59], 0 offen sc0 sc1")
    e("s_waitcnt vmcnt(0)")
    e("K3_GUDONE:")
    stamp(5)
    e("s_barrier")
    e("s_cmp_lg_u32 s18, 0")
    e("s_cbranch_scc1 K3_WAITWG")
    e("v_mov_b32 v8, 1")
    e("s_and_b32 s26, s2, 15")
    e("s_lshl_b32 s26, s26, 4")
    e("v_mov_b32 v9, s26")
    e("v_cmp_eq_u32 vcc, 0, v1")
    e("s_and_saveexec_b64 s[30:31], vcc")
    e("buffer_atomic_add v8, v9, s[72:75], 0 offen sc1")
    e("s_mov_b64 exec, s[30:31]")
    e("s_cmp_ge_u32 s2, 40")
    e("s_cbranch_scc1 K3_END")
    e("v_and_b32 v9, 15, v1")
    e("v_cmp_gt_u32 vcc, 12, v9")
    e("v_mov_b32 v11, 6")
    e("v_mov_b32 v12, 7")
    e("v_cndmask_b32 v11, v11, v12, vcc")
    e("v_lshlrev_b32 v9, 4, v9")
    e("K3_POLL:")
    e("buffer_load_dword v10, v9, s[72:75], 0 offen sc0 sc1")
    e("s_waitcnt vmcnt(0)")
    e("v_cmp_ge_u32 vcc, v10, v11")
    e("s_nop 3")
    e("s_cmp_eq_u64 vcc, exec")
    e("s_cbranch_scc1 K3_WAITWG")
    e("s_sleep 1")
    e("s_branch K3_POLL")
    e("K3_WAITWG:")
    stamp(6)
    e("s_cmp_ge_u32 s2, 40")
    e("s_cbranch_scc1 K3_END")
    e("s_barrier")
    e("v_lshlrev_b32 v22, 4, v0")
    for i in range(7):
        e(f"s_movk_i32 s22, {4096*i}")
        e(f"buffer_load_dwordx4 v[{64+4*i}:{67+4*i}], v22, s[56:59], s22 offen sc1")
    e(f"v_add_u32 v23, {K3_GU}, v22")
    for i in range(7):
        e(f"s_waitcnt vmcnt({6-i})")
        e(f"ds_write_b128 v23, v[{64+4*i}:{67+4*i}] offset:{4096*i}")
    e("v_and_b32 v21, 7, v1")
    e("s_movk_i32 s20, 3456")
    e("v_mul_lo_u32 v22, v21, s20")
    e("v_lshlrev_b32 v23, 4, v3")
    e("v_add_u32 v22, v22, v23")
    e("s_lshl_b32 s29, s27, 6")
    e(f"s_add_u32 s29, s29, {K3_GU}")
    e("v_add_u32 v22, s29, v22")
    for i in range(4):
        e(f"v_mov_b32 v{124+i}, 0")
    e("s_waitcnt lgkmcnt(0)")
    e("s_barrier")
    for ks in range(14):
        e(f"ds_read_b128 v[{64+4*ks}:{67+4*ks}], v22 offset:{64*ks}")
    for ks in range(14):
        if ks == 13:
            e("s_cmp_ge_u32 s18, 2")
            e("s_cbranch_scc1 K3_P2DONE")
        e(f"s_waitcnt lgkmcnt({min(13-ks,15)})")
        e(f"v_mfma_f32_16x16x32_bf16 v[124:127], v[{64+4*ks}:{67+4*ks}], v[{136+4*ks}:{139+4*ks}], v[124:127]")
    e("K3_P2DONE:")
    e("s_nop 7")
    stamp(7)
    e("s_lshl_b32 s25, s18, 10")
    e("v_lshlrev_b32 v4, 8, v3")
    e("v_lshlrev_b32 v6, 2, v2")
    e("v_add_u32 v4, v4, v6")
    e("v_add_u32 v4, s25, v4")
    for i in range(4):
        e(f"ds_write_b32 v4, v{124+i} offset:{K3_RED+64*i}")
    e("s_waitcnt lgkmcnt(0)")
    e("s_barrier")
    e("s_cmp_ge_u32 s18, 2")
    e("s_cbranch_scc1 K3_END")
    e("v_lshlrev_b32 v4, 2, v0")
    for w in range(4):
        e(f"ds_read_b32 v{8+w}, v4 offset:{K3_RED+1024*w}")
    e("v_lshrrev_b32 v24, 11, v60")
    e("v_and_b32 v25, 0x7fff, v24")
    e("v_xor_b32 v26, 0xffff, v24")
    e("v_cmp_lt_u32 vcc, 0x7fff, v24")
    e("s_nop 1")
    e("v_cndmask_b32 v24, v26, v25, vcc")
    e("v_lshlrev_b32 v24, 16, v24")
    e("v_mul_f32 v25, 0xbfb8aa3b, v24")
    e("v_exp_f32 v25, v25")
    e("s_nop 0")
    e("v_add_f32 v25, 1.0, v25")
    e("v_rcp_f32 v26, v25")
    e("s_nop 0")
    e("v_fma_f32 v27, -v26, v25, 1.0")
    e("v_fma_f32 v26, v27, v26, v26")
    e("v_cvt_pk_bf16_f32 v27, v26, v26")
    e("v_lshlrev_b32 v26, 16, v27")
    e("s_waitcnt lgkmcnt(0)")
    e("v_add_f32 v8, v8, v9")
    e("v_add_f32 v10, v10, v11")
    e("v_add_f32 v8, v8, v10")
    e("v_cvt_pk_bf16_f32 v9, v8, v8")
    e("v_lshlrev_b32 v8, 16, v9")
    e("v_mul_f32 v8, v8, v26")
    e("v_cvt_pk_bf16_f32 v9, v8, v8")
    e("v_lshlrev_b32 v8, 16, v9")
    e("v_lshlrev_b32 v62, 16, v62")
    e("v_lshlrev_b32 v63, 16, v63")
    e("v_add_f32 v8, v8, v63")
    e("v_cvt_pk_bf16_f32 v9, v8, v8")
    e("v_lshlrev_b32 v8, 16, v9")
    e("v_add_f32 v8, v8, v62")
    e("v_cvt_pk_bf16_f32 v9, v8, v8")
    e("buffer_store_short v9, v61, s[64:67], 0 offen")
    if "stamp3" in EXP:
        e("s_waitcnt vmcnt(0)")
        e("s_memtime s[92:93]")
        e("s_waitcnt lgkmcnt(0)")
        e("s_cmp_lg_u32 s2, 5"); e("s_cbranch_scc1 K3_END")
        e("s_cmp_lg_u32 s18, 0"); e("s_cbranch_scc1 K3_END")
        for i in range(8):
            e(f"s_sub_u32 s{78+2*i}, s{78+2*i}, s76")
            e(f"v_mov_b32 v{12+i}, s{78+2*i}")
        e("v_mov_b32 v10, 64")
        e("buffer_store_dwordx4 v[12:15], v10, s[72:75], 0 offen")
        e("buffer_store_dwordx4 v[16:19], v10, s[72:75], 0 offen offset:16")
    e("K3_END:")
    e("s_endpgm")
    kernel_desc(name, 192)

def main():
    hdr = open(OUT0 + ".ref").read().split("; Override launch geometry")[0]
    e(hdr.rstrip("\n"))
    e(f"; @launch kernel=kvt_kernel grid=(320,1,1) block=(256,1,1) lds={K0_LDS}")
    e(f"; @launch kernel=conv_kernel grid=(1055,1,1) block=(128,1,1) lds={K1_LDS}")
    e(f"; @launch kernel=rows_kernel grid=(256,1,1) block=(512,1,1) lds={K2_LDS}")
    e(f"; @launch kernel=ffn_kernel grid=(108,1,1) block=(256,1,1) lds={K3_LDS}")
    if "nop4" in EXP:
        for i in range(4):
            e(f"; @launch kernel=nop_kernel grid=(1,1,1) block=(64,1,1) lds=0")
    e('.amdgcn_target "amdgcn-amd-amdhsa--gfx950"')
    e(".text")
    if "nop4" in EXP:
        kernel_header("nop_kernel"); e("s_endpgm"); kernel_desc("nop_kernel", 8)
    k0(); k1(); k2(); k3()
    e('.section .rodata,"a"')
    for k in KD:
        e(k)
    open(OUT, "w").write("\n".join(L) + "\n")

main()
```

```python
import sys, os
EXP = os.environ.get("EXP", "")

NAME = "sequential_preLN__ssm_conv_h3__moe_arch_mod__prompt"
OUT0 = "cdna_kernels/%s.s" % NAME
OUT = os.environ.get("OUT", OUT0)

L = []
def e(s=""):
    L.append(s)

S_, D_, F_ = 2048, 640, 1728
ROWB = D_ * 2
TB = S_ * ROWB
WS_Z = 0
WS_H = TB
WS_HN = 2 * TB
WS_RK = 3 * TB
WS_GU = WS_RK + 8192
WS_TOP = WS_GU + 32768
WS_KVT = WS_TOP + 4096
WS_WT1 = WS_KVT + TB
WS_WT2 = WS_WT1 + 4423680
WS_SIZE = 268435456

def srd(sd, sb, nbytes, add=0):
    if add:
        e(f"s_add_u32 s{sd}, s{sb}, {add}")
        e(f"s_addc_u32 s{sd+1}, s{sb+1}, 0")
    else:
        e(f"s_mov_b32 s{sd}, s{sb}")
        e(f"s_mov_b32 s{sd+1}, s{sb+1}")
    e(f"s_mov_b32 s{sd+2}, {nbytes}")
    e(f"s_mov_b32 s{sd+3}, 0x00020000")

def kernel_header(name):
    e(f".globl {name}")
    e(".p2align 8")
    e(f".type {name},@function")
    e(f"{name}:")

KD = []
def kernel_desc(name, vgpr, sgpr=102):
    acc = (vgpr + 3) // 4 * 4
    KD.append(f""".p2align 6
.amdhsa_kernel {name}
  .amdhsa_next_free_vgpr {vgpr}
  .amdhsa_next_free_sgpr {sgpr}
  .amdhsa_accum_offset {acc}
  .amdhsa_group_segment_fixed_size 0
  .amdhsa_kernarg_size 112
  .amdhsa_user_sgpr_count 2
  .amdhsa_user_sgpr_kernarg_segment_ptr 1
  .amdhsa_system_sgpr_workgroup_id_x 1
.end_amdhsa_kernel""")

def round_list(regs, tmp):
    n = len(regs)
    assert n % 2 == 0
    for i in range(0, n, 2):
        e(f"v_cvt_pk_bf16_f32 v{tmp[i//2]}, v{regs[i]}, v{regs[i+1]}")
    for i in range(0, n, 2):
        e(f"v_lshlrev_b32 v{regs[i]}, 16, v{tmp[i//2]}")
        e(f"v_and_b32 v{regs[i+1]}, 0xffff0000, v{tmp[i//2]}")

def wave_reduce(op, v, vt, sdst):
    e("s_nop 1")
    e(f"{op}_dpp v{v}, v{v}, v{v} quad_perm:[1,0,3,2] row_mask:0xf bank_mask:0xf")
    e("s_nop 1")
    e(f"{op}_dpp v{v}, v{v}, v{v} quad_perm:[2,3,0,1] row_mask:0xf bank_mask:0xf")
    e("s_nop 1")
    e(f"{op}_dpp v{v}, v{v}, v{v} row_half_mirror row_mask:0xf bank_mask:0xf")
    e("s_nop 1")
    e(f"{op}_dpp v{v}, v{v}, v{v} row_mirror row_mask:0xf bank_mask:0xf")
    e("s_nop 1")
    e(f"{op}_dpp v{v}, v{v}, v{v} row_bcast:15 row_mask:0xa bank_mask:0xf")
    e("s_nop 1")
    e(f"{op}_dpp v{v}, v{v}, v{v} row_bcast:31 row_mask:0xc bank_mask:0xf")
    e("s_nop 1")
    e(f"v_readlane_b32 s{sdst}, v{v}, 63")
    e("s_nop 3")

K0_RS = 144
K0_LDS = 64 * K0_RS

def k0():
    name = "kvt_kernel"
    kernel_header(name)
    e("s_cmp_ge_u32 s2, 320")
    e("s_cbranch_scc1 K0_END")
    e("s_load_dwordx4 s[4:7], s[0:1], 8")
    e("s_load_dwordx2 s[8:9], s[0:1], 24")
    e("s_load_dwordx2 s[14:15], s[0:1], 104")
    e("s_mul_hi_u32 s16, s2, 0x1999999a")
    e("s_mul_i32 s17, s16, 10")
    e("s_sub_u32 s17, s2, s17")
    e("v_and_b32 v1, 7, v0")
    e("v_lshrrev_b32 v2, 3, v0")
    e("s_waitcnt lgkmcnt(0)")
    srd(40, 4, TB)
    srd(44, 6, TB)
    srd(48, 8, D_ * 8)
    srd(52, 14, TB, WS_KVT)
    e("s_lshl_b32 s18, s17, 9")
    e("v_lshlrev_b32 v3, 6, v1")
    e("v_add_u32 v3, s18, v3")
    for i in range(4):
        e(f"buffer_load_dwordx4 v[{8+4*i}:{11+4*i}], v3, s[48:51], 0 offen offset:{16*i}")
    e("s_lshl_b32 s19, s16, 6")
    e("v_lshlrev_b32 v4, 1, v2")
    e("v_add_u32 v4, s19, v4")
    e("s_movk_i32 s20, 1280")
    e("v_mul_lo_u32 v4, v4, s20")
    e("s_lshl_b32 s21, s17, 7")
    e("v_lshlrev_b32 v5, 4, v1")
    e("v_add_u32 v4, v4, v5")
    e("v_add_u32 v4, s21, v4")
    e("v_subrev_u32 v5, 3840, v4")
    KR = 24
    VR = 44
    for r in range(3):
        e(f"buffer_load_dwordx4 v[{KR+4*r}:{KR+4*r+3}], v5, s[40:43], 0 offen offset:{1280*r}")
    for r in range(2):
        e(f"buffer_load_dwordx4 v[{KR+12+4*r}:{KR+12+4*r+3}], v4, s[40:43], 0 offen offset:{1280*r}")
    for r in range(2):
        e(f"buffer_load_dwordx4 v[{VR+4*r}:{VR+4*r+3}], v4, s[44:47], 0 offen offset:{1280*r}")
    e(f"s_movk_i32 s22, {8*K0_RS}")
    e("v_mul_lo_u32 v6, v1, s22")
    e("v_lshlrev_b32 v7, 2, v2")
    e("v_sub_u32 v7, 124, v7")
    e("v_add_u32 v6, v6, v7")
    e("s_waitcnt vmcnt(0)")
    KF = list(range(64, 74))
    WF = list(range(74, 82))
    T = list(range(82, 86))
    U = list(range(86, 90))
    TMP = [90, 91]
    for p in range(4):
        for r in range(5):
            e(f"v_lshlrev_b32 v{KF[r]}, 16, v{KR+4*r+p}")
            e(f"v_and_b32 v{KF[5+r]}, 0xffff0000, v{KR+4*r+p}")
        for h in range(2):
            c = 2 * p + h
            e(f"v_lshlrev_b32 v{WF[4*h+0]}, 16, v{8+2*c}")
            e(f"v_and_b32 v{WF[4*h+1]}, 0xffff0000, v{8+2*c}")
            e(f"v_lshlrev_b32 v{WF[4*h+2]}, 16, v{8+2*c+1}")
            e(f"v_and_b32 v{WF[4*h+3]}, 0xffff0000, v{8+2*c+1}")
        for h in range(2):
            for r in range(2):
                e(f"v_mul_f32 v{T[2*h+r]}, v{WF[4*h+3]}, v{KF[5*h+r]}")
        round_list(T, TMP)
        for j in (2, 1, 0):
            for h in range(2):
                for r in range(2):
                    e(f"v_mul_f32 v{U[2*h+r]}, v{WF[4*h+j]}, v{KF[5*h+r+3-j]}")
            round_list(U, TMP)
            for q in range(4):
                e(f"v_add_f32 v{T[q]}, v{T[q]}, v{U[q]}")
            round_list(T, TMP)
        for r in range(2):
            e(f"v_lshlrev_b32 v{U[r]}, 16, v{VR+4*r+p}")
            e(f"v_and_b32 v{U[2+r]}, 0xffff0000, v{VR+4*r+p}")
        for q in range(4):
            e(f"v_mul_f32 v{T[q]}, v{T[q]}, v{U[q]}")
        for h in range(2):
            e(f"v_cvt_pk_bf16_f32 v{TMP[h]}, v{T[2*h+1]}, v{T[2*h]}")
            e(f"ds_write_b32 v6, v{TMP[h]} offset:{(2*p+h)*K0_RS}")
    e("s_waitcnt lgkmcnt(0)")
    e("s_barrier")
    e(f"s_movk_i32 s22, {K0_RS}")
    e("v_mul_lo_u32 v6, v2, s22")
    e("v_lshlrev_b32 v7, 4, v1")
    e("v_add_u32 v6, v6, v7")
    e("ds_read_b128 v[8:11], v6")
    e(f"ds_read_b128 v[12:15], v6 offset:{32*K0_RS}")
    e("s_lshl_b32 s18, s17, 18")
    e("s_lshl_b32 s19, s16, 7")
    e("s_sub_u32 s19, 3968, s19")
    e("s_add_u32 s18, s18, s19")
    e("v_lshlrev_b32 v4, 12, v2")
    e("v_add_u32 v4, v4, v7")
    e("v_add_u32 v4, s18, v4")
    e("s_mov_b32 s23, 0x20000")
    e("s_waitcnt lgkmcnt(0)")
    e("buffer_store_dwordx4 v[8:11], v4, s[52:55], 0 offen")
    e("buffer_store_dwordx4 v[12:15], v4, s[52:55], s23 offen")
    e("K0_END:")
    e("s_endpgm")
    kernel_desc(name, 96)

KE = 0
KO = 4164
XR = 8288
K1_LDS = 16384

def k1():
    name = "conv_kernel"
    kernel_header(name)
    e("s_cmp_ge_u32 s2, 1055")
    e("s_cbranch_scc1 K1_END")
    e("s_cmp_ge_u32 s2, 640")
    e("s_cbranch_scc1 K1_RELAY")
    if "stamp" in EXP:
        e("s_memtime s[80:81]"); e("s_memrealtime s[82:83]")
    e("s_load_dwordx2 s[10:11], s[0:1], 32")
    e("s_load_dwordx2 s[12:13], s[0:1], 40")
    e("s_load_dwordx2 s[14:15], s[0:1], 104")
    e("v_and_b32 v1, 63, v0")
    e("v_lshrrev_b32 v2, 6, v0")
    e("s_lshl_b32 s19, s2, 12")
    e("v_lshlrev_b32 v3, 4, v0")
    e("v_add_u32 v3, s19, v3")
    e("v_subrev_u32 v4, 4, v3")
    e("v_readfirstlane_b32 s18, v2")
    e("s_waitcnt lgkmcnt(0)")
    if "stamp" in EXP:
        e("s_memtime s[70:71]")
    e("s_and_b32 s17, s2, 0xfffffffe")
    e("s_lshl_b32 s17, s17, 1")
    e("s_add_u32 s12, s12, s17")
    e("s_addc_u32 s13, s13, 0")
    e("s_load_dword s32, s[12:13], 0")
    srd(48, 10, D_ * S_ * 2)
    srd(44, 14, TB, WS_KVT)
    srd(52, 14, TB, WS_Z)
    for r in range(2):
        e(f"buffer_load_dwordx4 v[{20+4*r}:{23+4*r}], v3, s[48:51], 0 offen offset:{2048*r}")
    for r in range(2):
        e(f"buffer_load_dword v{28+r}, v4, s[48:51], 0 offen offset:{2048*r}")
    for r in range(2):
        e(f"buffer_load_dwordx4 v[{32+4*r}:{35+4*r}], v3, s[44:47], 0 offen offset:{2048*r}")
    e("v_mov_b32 v8, 0")
    e("v_mov_b32 v9, 0")
    e("v_mov_b32 v10, 0")
    e("v_mov_b32 v11, 0")
    e("v_lshlrev_b32 v12, 4, v0")
    e("v_cmp_gt_u32 vcc, 30, v0")
    e("s_and_saveexec_b64 s[38:39], vcc")
    e(f"ds_write_b128 v12, v[8:11] offset:{XR+4096}")
    e("s_mov_b64 exec, s[38:39]")
    e("v_lshlrev_b32 v13, 2, v0")
    e("v_cmp_gt_u32 vcc, 8, v0")
    e("s_and_saveexec_b64 s[38:39], vcc")
    e(f"ds_write_b32 v13, v8 offset:{KE}")
    e("s_mov_b64 exec, s[38:39]")
    e("v_cmp_gt_u32 vcc, 7, v0")
    e("s_and_saveexec_b64 s[38:39], vcc")
    e(f"ds_write_b32 v13, v8 offset:{KO}")
    e("s_mov_b64 exec, s[38:39]")
    e("v_and_b32 v2, 15, v1")
    e("v_lshrrev_b32 v3, 4, v1")
    e("v_lshlrev_b32 v4, 3, v3")
    e("v_add_u32 v4, v4, v2")
    e("v_lshlrev_b32 v4, 1, v4")
    e("v_and_b32 v5, 1, v2")
    e("v_cmp_eq_u32 vcc, 1, v5")
    e(f"v_mov_b32 v6, {KO}")
    e(f"v_mov_b32 v7, {KE+2}")
    e("v_cndmask_b32 v5, v6, v7, vcc")
    e("s_lshl_b32 s20, s18, 8")
    e("v_add_u32 v40, v4, v5")
    e("v_add_u32 v40, s20, v40")
    e("v_add_u32 v41, 1024, v40")
    e("v_add_u32 v42, 2048, v40")
    e("v_add_u32 v43, 3072, v40")
    e("v_lshlrev_b32 v44, 5, v2")
    e("v_lshlrev_b32 v13, 4, v3")
    e(f"v_sub_u32 v44, {XR+480}, v44")
    e("v_add_u32 v44, v44, v13")
    e("v_add_u32 v44, s20, v44")
    ACC = 128
    for i in range(32):
        e(f"v_mov_b32 v{ACC+i}, 0")
    if "stamp" in EXP:
        e("s_memtime s[72:73]")
    e("s_waitcnt vmcnt(2)")
    if "stamp" in EXP:
        e("s_memtime s[74:75]")
    e("v_cmp_eq_u32 vcc, 0, v0")
    e("s_nop 1")
    e("v_cndmask_b32 v28, v28, v8, vcc")
    for r in range(2):
        b = 20 + 4 * r
        e(f"ds_write_b128 v12, v[{b}:{b+3}] offset:{KE+32+2048*r}")
        e(f"v_alignbit_b32 v16, v{b}, v{28+r}, 16")
        e(f"v_alignbit_b32 v17, v{b+1}, v{b}, 16")
        e(f"v_alignbit_b32 v18, v{b+2}, v{b+1}, 16")
        e(f"v_alignbit_b32 v19, v{b+3}, v{b+2}, 16")
        e(f"ds_write_b128 v12, v[16:19] offset:{KO+28+2048*r}")
        e("s_nop 1")
    e("s_waitcnt vmcnt(0)")
    for r in range(2):
        e(f"ds_write_b128 v12, v[{32+4*r}:{35+4*r}] offset:{XR+2048*r}")
    e("s_waitcnt lgkmcnt(0)")
    e("s_and_b32 s35, s2, 1")
    e("s_cmp_eq_u32 s35, 0")
    e("s_cbranch_scc1 K1_DLO")
    e("s_and_b32 s34, s32, 0xffff0000")
    e("s_branch K1_DDONE")
    e("K1_DLO:")
    e("s_lshl_b32 s34, s32, 16")
    e("K1_DDONE:")
    e("s_barrier")
    if "stamp" in EXP:
        e("s_memtime s[84:85]")
    SETS = [(64, 96), (160, 192)]
    def reads(c0, st):
        A, B = SETS[st]
        out = []
        for t in range(8):
            ar = 40 + t // 2
            off = (64 * c0 + 512 * (t & 1)) // 4
            out.append(f"ds_read2_b32 v[{A+4*t}:{A+4*t+1}], v{ar} offset0:{off} offset1:{off+1}")
            out.append(f"ds_read2_b32 v[{A+4*t+2}:{A+4*t+3}], v{ar} offset0:{off+2} offset1:{off+3}")
        for wp in range(8):
            out.append(f"ds_read_b128 v[{B+4*wp}:{B+4*wp+3}], v44 offset:{64*c0+512*(7-wp)}")
        return out
    for x in reads(0, 0):
        e(x)
    NC = 4
    for c0 in range(NC):
        st = c0 & 1
        A, B = SETS[st]
        e("s_waitcnt lgkmcnt(0)")
        nxt = reads(c0 + 1, st ^ 1) if c0 < NC - 1 else []
        for j in range(8):
            for t in range(j + 1):
                a = A + 4 * t
                b = B + 4 * (j - t)
                d = ACC + 4 * j
                e(f"v_mfma_f32_16x16x32_bf16 v[{d}:{d+3}], v[{a}:{a+3}], v[{b}:{b+3}], v[{d}:{d+3}]")
                for _ in range(2):
                    if nxt:
                        e(nxt.pop(0))
    e("s_nop 15")
    if "stamp" in EXP:
        e("s_memtime s[86:87]")
    e("s_barrier")
    e("v_lshlrev_b32 v5, 2, v1")
    e("s_xor_b32 s21, s18, 1")
    e("s_lshl_b32 s21, s21, 12")
    e("v_add_u32 v6, s21, v5")
    e("s_lshl_b32 s22, s18, 12")
    e("v_add_u32 v7, s22, v5")
    e("s_cmp_eq_u32 s18, 0")
    e("s_cbranch_scc1 K1_W0")
    for q in range(16):
        e(f"ds_write_b32 v6, v{ACC+q} offset:{256*q}")
    for q in range(16):
        e(f"v_mov_b32 v{ACC+q}, v{ACC+16+q}")
    e("s_branch K1_XDONE")
    e("K1_W0:")
    for q in range(16):
        e(f"ds_write_b32 v6, v{ACC+16+q} offset:{256*q}")
    e("K1_XDONE:")
    e("s_waitcnt lgkmcnt(0)")
    e("s_barrier")
    for q in range(16):
        e(f"ds_read_b32 v{64+q}, v7 offset:{256*q}")
    e("v_lshlrev_b32 v4, 5, v2")
    e("v_lshlrev_b32 v5, 3, v3")
    e("v_add_u32 v4, v4, v5")
    e("s_lshl_b32 s23, s18, 11")
    e(f"v_sub_u32 v8, {XR+4088-1536}, v4")
    e("v_subrev_u32 v8, s23, v8")
    for j4 in range(4):
        e(f"ds_read_b64 v[{80+2*j4}:{81+2*j4}], v8 offset:{512*(3-j4)}")
    e("v_add_u32 v9, s19, v4")
    e("v_add_u32 v9, s23, v9")
    e("s_waitcnt lgkmcnt(0)")
    for j4 in range(4):
        a = ACC + 4 * j4
        Y = [a, a + 1, a + 2, a + 3]
        for i in range(4):
            e(f"v_add_f32 v{Y[i]}, v{Y[i]}, v{64+4*j4+i}")
        round_list(Y, [20, 21])
        e(f"v_and_b32 v24, 0xffff0000, v{81+2*j4}")
        e(f"v_lshlrev_b32 v25, 16, v{81+2*j4}")
        e(f"v_and_b32 v26, 0xffff0000, v{80+2*j4}")
        e(f"v_lshlrev_b32 v27, 16, v{80+2*j4}")
        for i in range(4):
            e(f"v_mul_f32 v{24+i}, s34, v{24+i}")
        round_list([24, 25, 26, 27], [20, 21])
        for i in range(4):
            e(f"v_add_f32 v{24+i}, v{24+i}, v{Y[i]}")
        e(f"v_cvt_pk_bf16_f32 v{96+2*j4}, v24, v25")
        e(f"v_cvt_pk_bf16_f32 v{97+2*j4}, v26, v27")
        e(f"buffer_store_dwordx2 v[{96+2*j4}:{97+2*j4}], v9, s[52:55], 0 offen offset:{512*j4}")
    if "stamp" in EXP:
        e("s_waitcnt vmcnt(0)")
        e("s_memtime s[88:89]"); e("s_memrealtime s[90:91]")
        e("s_load_dwordx2 s[92:93], s[0:1], 96")
        e("s_waitcnt lgkmcnt(0)")
        srd(96, 92, 256)
        e("s_cmp_lg_u32 s2, 300"); e("s_cbranch_scc1 K1_END")
        e("s_cmp_lg_u32 s18, 0"); e("s_cbranch_scc1 K1_END")
        e("s_sub_u32 s84, s84, s80"); e("s_sub_u32 s86, s86, s80"); e("s_sub_u32 s88, s88, s80"); e("s_sub_u32 s90, s90, s82")
        e("s_sub_u32 s70, s70, s80"); e("s_sub_u32 s72, s72, s80"); e("s_sub_u32 s74, s74, s80")
        for i, r in enumerate([84, 86, 88, 90, 70, 72, 74, 74]):
            e(f"v_mov_b32 v{12+i}, s{r}")
        e("v_mov_b32 v10, 0")
        e("buffer_store_dwordx4 v[12:15], v10, s[96:99], 0 offen")
        e("buffer_store_dwordx4 v[16:19], v10, s[96:99], 0 offen offset:16")
    e("s_endpgm")
    e("K1_RELAY:")
    e("s_load_dwordx4 s[4:7], s[0:1], 64")
    e("s_load_dwordx2 s[8:9], s[0:1], 80")
    e("s_load_dwordx2 s[14:15], s[0:1], 104")
    e("v_and_b32 v1, 63, v0")
    e("v_lshrrev_b32 v2, 6, v0")
    e("s_mov_b32 s30, 0x05040100")
    e("s_mov_b32 s31, 0x07060302")
    e("v_readfirstlane_b32 s18, v2")
    e("s_sub_u32 s16, s2, 640")
    e("s_lshl_b32 s16, s16, 1")
    e("s_nop 2")
    e("s_add_u32 s16, s16, s18")
    e("v_lshrrev_b32 v3, 3, v1")
    e("v_bfe_u32 v4, v1, 1, 2")
    e("v_and_b32 v5, 1, v1")
    e("s_cmp_ge_u32 s16, 560")
    e("s_cbranch_scc1 K1_RDOWN")
    e("s_cmp_ge_u32 s16, 280")
    e("s_cselect_b32 s17, 1, 0")
    e("s_mul_i32 s19, s17, 280")
    e("s_sub_u32 s16, s16, s19")
    e("s_mul_hi_u32 s20, s16, 306783379")
    e("s_mul_i32 s19, s20, 14")
    e("s_sub_u32 s21, s16, s19")
    e("s_waitcnt lgkmcnt(0)")
    e("s_cmp_eq_u32 s17, 0")
    e("s_cselect_b32 s4, s4, s6")
    e("s_cselect_b32 s5, s5, s7")
    srd(40, 4, D_ * F_ * 2)
    srd(44, 14, 4423680, WS_WT1)
    e("s_movk_i32 s22, 3456")
    e("s_movk_i32 s23, 108")
    e("s_mul_i32 s24, s17, 20")
    e("s_add_u32 s24, s24, s20")
    e("s_lshl_b32 s24, s24, 10")
    e("s_mov_b32 s25, 40960")
    e("s_branch K1_RGO")
    e("K1_RDOWN:")
    e("s_sub_u32 s16, s16, 560")
    e("s_mul_hi_u32 s20, s16, 858993460")
    e("s_mul_i32 s19, s20, 5")
    e("s_sub_u32 s21, s16, s19")
    e("s_waitcnt lgkmcnt(0)")
    srd(40, 8, D_ * F_ * 2)
    srd(44, 14, 2211840, WS_WT2)
    e("s_movk_i32 s22, 1280")
    e("s_movk_i32 s23, 40")
    e("s_lshl_b32 s24, s20, 10")
    e("s_mov_b32 s25, 55296")
    e("K1_RGO:")
    e("s_lshl_b32 s26, s20, 5")
    e("v_lshlrev_b32 v6, 3, v4")
    e("v_add_u32 v6, s26, v6")
    e("v_mul_lo_u32 v6, v6, s22")
    e("s_lshl_b32 s27, s21, 8")
    e("v_lshlrev_b32 v7, 5, v3")
    e("v_add_u32 v6, v6, v7")
    e("v_lshlrev_b32 v7, 4, v5")
    e("v_add_u32 v6, v6, v7")
    e("v_add_u32 v6, s27, v6")
    e("s_mov_b32 s28, 0")
    for i in range(8):
        e(f"buffer_load_dwordx4 v[{8+4*i}:{11+4*i}], v6, s[40:43], s28 offen")
        if i < 7:
            e("s_add_u32 s28, s28, s22")
    e("s_lshl_b32 s29, s18, 13")
    e("v_lshlrev_b32 v72, 7, v1")
    e("v_add_u32 v72, s29, v72")
    e("v_and_b32 v73, 7, v1")
    e("v_lshlrev_b32 v73, 4, v73")
    e("v_lshlrev_b32 v74, 7, v3")
    e("v_lshlrev_b32 v75, 4, v3")
    e("v_xor_b32 v75, v75, v73")
    e("v_add_u32 v74, v74, v75")
    e("v_add_u32 v74, s29, v74")
    e("s_waitcnt vmcnt(0)")
    for c in range(8):
        d, h = c >> 1, c & 1
        for p in range(4):
            e(f"v_perm_b32 v{40+4*c+p}, v{8+4*(2*p+1)+d}, v{8+4*(2*p)+d}, s{30+h}")
    for c in range(8):
        e(f"v_xor_b32 v75, {16*c}, v73")
        e("v_add_u32 v75, v72, v75")
        e(f"ds_write_b128 v75, v[{40+4*c}:{43+4*c}]")
    e("s_waitcnt lgkmcnt(0)")
    for q in range(8):
        e(f"ds_read_b128 v[{8+4*q}:{11+4*q}], v74 offset:{1024*q}")
    e("s_lshl_b32 s26, s21, 3")
    e("s_mul_i32 s27, s26, s25")
    e("s_add_u32 s27, s27, s24")
    e("v_lshlrev_b32 v6, 4, v1")
    e("s_waitcnt lgkmcnt(0)")
    for q in range(8):
        e(f"s_cmp_ge_u32 s26, s23")
        e("s_cbranch_scc1 K1_END")
        e(f"buffer_store_dwordx4 v[{8+4*q}:{11+4*q}], v6, s[44:47], s27 offen")
        e("s_add_u32 s26, s26, 1")
        e("s_add_u32 s27, s27, s25")
    e("K1_END:")
    e("s_endpgm")
    kernel_desc(name, 224)

def unpack10(src4, src1, dst):
    for i in range(4):
        e(f"v_lshlrev_b32 v{dst[2*i]}, 16, v{src4+i}")
        e(f"v_and_b32 v{dst[2*i+1]}, 0xffff0000, v{src4+i}")
    e(f"v_lshlrev_b32 v{dst[8]}, 16, v{src1}")
    e(f"v_and_b32 v{dst[9]}, 0xffff0000, v{src1}")

def layernorm(X, OUTR, TMP, sc):
    e(f"v_add_f32 v60, v{X[0]}, v{X[1]}")
    for i in range(2, 10):
        e(f"v_add_f32 v60, v60, v{X[i]}")
    wave_reduce("v_add_f32", 60, None, sc)
    e(f"v_mov_b32 v61, 0x3acccccd")
    e(f"v_mul_f32 v61, s{sc}, v61")
    e(f"v_sub_f32 v62, v{X[0]}, v61")
    e("v_mul_f32 v60, v62, v62")
    for i in range(1, 10):
        e(f"v_sub_f32 v62, v{X[i]}, v61")
        e("v_fmac_f32 v60, v62, v62")
    wave_reduce("v_add_f32", 60, None, sc + 1)
    e(f"v_mov_b32 v62, 0x3acccccd")
    e(f"v_mul_f32 v62, s{sc+1}, v62")
    e("v_cvt_pk_bf16_f32 v63, v61, v62")
    e("v_lshlrev_b32 v61, 16, v63")
    e("v_and_b32 v62, 0xffff0000, v63")
    e("v_add_f32 v62, 0x3727c5ac, v62")
    e("v_cvt_pk_bf16_f32 v63, v62, v62")
    e("v_lshlrev_b32 v62, 16, v63")
    e("v_sqrt_f32 v62, v62")
    e("s_nop 0")
    e("v_cvt_pk_bf16_f32 v63, v62, v62")
    e("v_lshlrev_b32 v62, 16, v63")
    e("v_rcp_f32 v63, v62")
    e("s_nop 0")
    for i in range(10):
        e(f"v_sub_f32 v{OUTR[i]}, v{X[i]}, v61")
    round_list(OUTR, TMP)
    for i in range(10):
        e(f"v_mul_f32 v60, v{OUTR[i]}, v63")
        e(f"v_fma_f32 v{OUTR[i]}, -v60, v62, v{OUTR[i]}")
        e(f"v_fma_f32 v{OUTR[i]}, v{OUTR[i]}, v63, v60")
    round_list(OUTR, TMP)

def pack_store(R, P, voff4, voff1, srdr):
    for i in range(5):
        e(f"v_cvt_pk_bf16_f32 v{P+i}, v{R[2*i]}, v{R[2*i+1]}")
    e(f"buffer_store_dwordx4 v[{P}:{P+3}], v{voff4}, s[{srdr}:{srdr+3}], 0 offen")
    e(f"buffer_store_dword v{P+4}, v{voff1}, s[{srdr}:{srdr+3}], 0 offen")

K2_LDS = 8 * 1280

def k2():
    name = "rows_kernel"
    kernel_header(name)
    e("s_cmp_ge_u32 s2, 256")
    e("s_cbranch_scc1 K2_END")
    if "stamp2" in EXP: e("s_memtime s[76:77]")
    e("s_load_dwordx2 s[4:5], s[0:1], 0")
    e("s_load_dwordx2 s[6:7], s[0:1], 56")
    e("s_load_dwordx2 s[8:9], s[0:1], 88")
    e("s_load_dwordx2 s[14:15], s[0:1], 104")
    e("s_and_b32 s16, s2, 7")
    e("s_lshl_b32 s16, s16, 5")
    e("s_lshr_b32 s17, s2, 3")
    e("s_add_u32 s16, s16, s17")
    e("v_and_b32 v1, 63, v0")
    e("v_lshrrev_b32 v2, 6, v0")
    e("s_lshl_b32 s18, s16, 3")
    e("v_add_u32 v2, s18, v2")
    e("s_movk_i32 s17, 1280")
    e("v_mul_lo_u32 v3, v2, s17")
    e("v_lshlrev_b32 v4, 4, v1")
    e("v_lshlrev_b32 v5, 2, v1")
    e("v_add_u32 v5, 1024, v5")
    e("v_add_u32 v6, v3, v4")
    e("v_add_u32 v7, v3, v5")
    e("v_lshlrev_b32 v30, 13, v0")
    e("s_lshl_b32 s19, s16, 4")
    e("v_add_u32 v30, s19, v30")
    e("s_mov_b32 s28, 0x05040100")
    e("s_mov_b32 s29, 0x07060302")
    e("s_waitcnt lgkmcnt(0)")
    srd(40, 4, TB)
    srd(44, 6, ROWB)
    srd(48, 8, TB)
    srd(52, 14, TB, WS_Z)
    srd(56, 14, TB, WS_H)
    srd(60, 14, TB, WS_HN)
    srd(64, 14, 8192, WS_RK)
    e("s_movk_i32 s20, 4096")
    e("buffer_load_dwordx4 v[32:35], v30, s[52:55], 0 offen")
    e("buffer_load_dwordx4 v[36:39], v30, s[52:55], s20 offen")
    e("buffer_load_dwordx4 v[8:11], v6, s[40:43], 0 offen")
    e("buffer_load_dword v12, v7, s[40:43], 0 offen")
    e("buffer_load_dwordx4 v[24:27], v4, s[44:47], 0 offen")
    e("buffer_load_dword v28, v5, s[44:47], 0 offen")
    e("v_lshlrev_b32 v31, 2, v0")
    e("s_waitcnt vmcnt(4)")
    if "stamp2" in EXP: e("s_memtime s[78:79]")
    e("v_cmp_gt_u32 vcc, 320, v0")
    e("s_and_saveexec_b64 s[30:31], vcc")
    for r in range(8):
        e(f"v_perm_b32 v{40+r}, v{36+r//2}, v{32+r//2}, s{28+(r&1)}")
    for r in range(8):
        e(f"ds_write_b32 v31, v{40+r} offset:{1280*r}")
    e("s_mov_b64 exec, s[30:31]")
    X = list(range(64, 74))
    QN = list(range(74, 84))
    Z = list(range(84, 94))
    H = list(range(94, 104))
    TMP = list(range(104, 109))
    e("s_waitcnt vmcnt(2)")
    unpack10(8, 12, X)
    e("s_waitcnt lgkmcnt(0)")
    e("s_barrier")
    if "stamp2" in EXP: e("s_memtime s[80:81]")
    e("v_lshrrev_b32 v29, 6, v0")
    e("v_mul_lo_u32 v29, v29, s17")
    e("v_add_u32 v31, v29, v4")
    e("v_add_u32 v29, v29, v5")
    e("ds_read_b128 v[16:19], v31")
    e("ds_read_b32 v20, v29")
    layernorm(X, QN, TMP, 20)
    e("s_waitcnt lgkmcnt(0)")
    unpack10(16, 20, Z)
    for i in range(10):
        e(f"v_mul_f32 v{QN[i]}, v{QN[i]}, v{Z[i]}")
    round_list(QN, TMP)
    for i in range(10):
        e(f"v_add_f32 v{H[i]}, v{X[i]}, v{QN[i]}")
    round_list(H, TMP)
    if "stamp2" in EXP: e("s_memtime s[82:83]")
    pack_store(H, 112, 6, 7, 56)
    HN = QN
    layernorm(H, HN, TMP, 22)
    pack_store(HN, 120, 6, 7, 60)
    e("s_waitcnt vmcnt(4)")
    W = Z
    unpack10(24, 28, W)
    e(f"v_mul_f32 v60, v{HN[0]}, v{W[0]}")
    for i in range(1, 10):
        e(f"v_fmac_f32 v60, v{HN[i]}, v{W[i]}")
    wave_reduce("v_add_f32", 60, None, 24)
    for i in range(10):
        e(f"v_add_f32 v{X[i]}, v{H[i]}, v{HN[i]}")
    if "stamp2" in EXP: e("s_memtime s[84:85]")
    pack_store(X, 128, 6, 7, 48)
    e("v_mov_b32 v60, s24")
    e("v_cvt_pk_bf16_f32 v61, v60, v60")
    e("v_and_b32 v61, 0xffff, v61")
    e("v_xor_b32 v62, 0xffff, v61")
    e("v_or_b32 v63, 0x8000, v61")
    e("v_cmp_gt_u32 vcc, 0x8000, v61")
    e("s_nop 1")
    e("v_cndmask_b32 v61, v62, v63, vcc")
    e("v_lshlrev_b32 v61, 11, v61")
    e("v_sub_u32 v62, 2047, v2")
    e("v_or_b32 v61, v61, v62")
    e("v_lshlrev_b32 v62, 2, v2")
    e("v_cmp_eq_u32 vcc, 0, v1")
    e("s_and_saveexec_b64 s[30:31], vcc")
    e("buffer_store_dword v61, v62, s[64:67], 0 offen")
    if "stamp2" in EXP:
        e("s_mov_b64 exec, -1")
        e("s_waitcnt vmcnt(0)")
        e("s_memtime s[86:87]")
        e("s_load_dwordx2 s[92:93], s[0:1], 96")
        e("s_waitcnt lgkmcnt(0)")
        srd(96, 92, 256)
        e("s_cmp_lg_u32 s2, 100"); e("s_cbranch_scc1 K2_END")
        e("v_readfirstlane_b32 s90, v0"); e("s_nop 3"); e("s_cmp_lg_u32 s90, 0"); e("s_cbranch_scc1 K2_END")
        for i in range(5):
            e(f"s_sub_u32 s{78+2*i}, s{78+2*i}, s76")
            e(f"v_mov_b32 v{12+i}, s{78+2*i}")
        e("v_mov_b32 v10, 64")
        e("buffer_store_dwordx4 v[12:15], v10, s[96:99], 0 offen")
        e("buffer_store_dwordx4 v[16:19], v10, s[96:99], 0 offen offset:16")
    e("K2_END:")
    e("s_endpgm")
    kernel_desc(name, 136)

K3_CAND = 0
K3_TOP = 128
K3_RED = 256
K3_GU = K3_RED + 8192
K3_LDS = K3_GU + 28672 + 1024
NWG3 = 108

def stamp(n, tag="stamp3"):
    if tag in EXP:
        e(f"s_memtime s[{76+2*n}:{77+2*n}]")

def k3():
    name = "ffn_kernel"
    kernel_header(name)
    e(f"s_cmp_ge_u32 s2, {NWG3}")
    e("s_cbranch_scc1 K3_END")
    stamp(0)
    e("s_load_dwordx2 s[10:11], s[0:1], 88")
    e("s_load_dwordx4 s[12:15], s[0:1], 96")
    e("v_and_b32 v1, 63, v0")
    e("v_lshrrev_b32 v2, 6, v0")
    e("v_lshlrev_b32 v3, 5, v0")
    e("v_readfirstlane_b32 s18, v2")
    e("s_lshl_b32 s21, s2, 5")
    e("s_waitcnt lgkmcnt(0)")
    srd(52, 14, 8192, WS_RK)
    e("buffer_load_dwordx4 v[8:11], v3, s[52:55], 0 offen")
    e("buffer_load_dwordx4 v[12:15], v3, s[52:55], 0 offen offset:16")
    srd(40, 14, 4423680, WS_WT1)
    srd(60, 14, 2211840, WS_WT2)
    srd(48, 14, TB, WS_HN)
    srd(56, 14, 8 * F_ * 2, WS_GU)
    srd(64, 10, TB)
    srd(68, 14, TB, WS_H)
    srd(72, 12, 256)
    e("s_mul_i32 s19, s2, 40960")
    e("s_mul_i32 s20, s18, 5120")
    e("s_add_u32 s19, s19, s20")
    e("v_lshlrev_b32 v4, 4, v1")
    e("v_add_u32 v4, s19, v4")
    e("s_movk_i32 s22, 20480")
    for ks in range(5):
        if ks < 4:
            e(f"buffer_load_dwordx4 v[{64+4*ks}:{67+4*ks}], v4, s[40:43], 0 offen offset:{1024*ks}")
            e(f"buffer_load_dwordx4 v[{84+4*ks}:{87+4*ks}], v4, s[40:43], s22 offen offset:{1024*ks}")
        else:
            e("v_add_u32 v5, 4096, v4")
            e(f"buffer_load_dwordx4 v[{64+4*ks}:{67+4*ks}], v5, s[40:43], 0 offen")
            e(f"buffer_load_dwordx4 v[{84+4*ks}:{87+4*ks}], v5, s[40:43], s22 offen")
    e("s_mul_i32 s27, s18, 14")
    e("s_cmp_eq_u32 s18, 3")
    e("s_cselect_b32 s28, 1, 0")
    e("s_sub_u32 s27, s27, s28")
    e("s_cmp_ge_u32 s2, 40")
    e("s_cbranch_scc1 K3_NOWD")
    e("s_mul_i32 s19, s2, 55296")
    e("s_lshl_b32 s20, s27, 10")
    e("s_add_u32 s19, s19, s20")
    e("v_lshlrev_b32 v6, 4, v1")
    e("v_add_u32 v6, s19, v6")
    for i in range(14):
        e(f"s_movk_i32 s22, {4096*(i//4)}")
        e(f"buffer_load_dwordx4 v[{136+4*i}:{139+4*i}], v6, s[60:63], s22 offen offset:{1024*(i%4)}")
    e("s_waitcnt vmcnt(24)")
    e("s_branch K3_WDDONE")
    e("K3_NOWD:")
    e("s_waitcnt vmcnt(10)")
    e("K3_WDDONE:")
    stamp(1)
    K = list(range(8, 16))
    e("v_mov_b32 v20, 0")
    for rnd in range(8):
        e(f"v_max3_u32 v16, v{K[0]}, v{K[1]}, v{K[2]}")
        e(f"v_max3_u32 v17, v{K[3]}, v{K[4]}, v{K[5]}")
        e(f"v_max3_u32 v16, v16, v{K[6]}, v{K[7]}")
        e("v_max_u32 v16, v16, v17")
        wave_reduce("v_max_u32", 16, None, 24)
        e(f"v_writelane_b32 v20, s24, {rnd}")
        if rnd < 7:
            for k in K:
                e(f"v_cmp_ne_u32 vcc, s24, v{k}")
                e("s_nop 1")
                e(f"v_cndmask_b32 v{k}, 0, v{k}, vcc")
    e("s_lshl_b32 s23, s18, 5")
    e("v_lshlrev_b32 v21, 2, v1")
    e("v_add_u32 v21, s23, v21")
    e("v_cmp_gt_u32 vcc, 8, v1")
    e("s_and_saveexec_b64 s[30:31], vcc")
    e(f"ds_write_b32 v21, v20 offset:{K3_CAND}")
    e("s_mov_b64 exec, s[30:31]")
    e("s_waitcnt lgkmcnt(0)")
    e("s_barrier")
    e("v_and_b32 v21, 31, v1")
    e("v_lshlrev_b32 v21, 2, v21")
    e(f"ds_read_b32 v22, v21 offset:{K3_CAND}")
    e("v_mov_b32 v23, 0")
    for i in range(8):
        e(f"ds_read_b128 v[{24+4*i}:{27+4*i}], v23 offset:{K3_CAND+16*i}")
    e("s_waitcnt lgkmcnt(0)")
    e("v_mov_b32 v21, 0")
    for i in range(32):
        e(f"v_cmp_gt_u32 vcc, v{24+i}, v22")
        e("s_nop 1")
        e("v_addc_co_u32 v21, vcc, 0, v21, vcc")
    e("v_lshlrev_b32 v23, 2, v21")
    e("v_cmp_gt_u32 vcc, 8, v21")
    e("s_and_saveexec_b64 s[30:31], vcc")
    e(f"ds_write_b32 v23, v22 offset:{K3_TOP}")
    e("s_mov_b64 exec, s[30:31]")
    e("s_waitcnt lgkmcnt(0)")
    e("s_barrier")
    e("v_and_b32 v21, 7, v1")
    e("v_lshlrev_b32 v21, 2, v21")
    e(f"ds_read_b32 v22, v21 offset:{K3_TOP}")
    e("v_lshrrev_b32 v61, 4, v0")
    e("v_and_b32 v61, 7, v61")
    e("v_lshlrev_b32 v61, 2, v61")
    e(f"ds_read_b32 v60, v61 offset:{K3_TOP}")
    e("s_waitcnt lgkmcnt(0)")
    stamp(2)
    e("v_and_b32 v22, 2047, v22")
    e("v_sub_u32 v22, 2047, v22")
    e("s_movk_i32 s20, 1280")
    e("v_mul_lo_u32 v22, v22, s20")
    e("v_lshrrev_b32 v3, 4, v1")
    e("v_lshlrev_b32 v23, 4, v3")
    e("v_add_u32 v22, v22, v23")
    e("s_mul_i32 s19, s18, 320")
    e("v_add_u32 v22, s19, v22")
    for ks in range(5):
        e(f"buffer_load_dwordx4 v[{104+4*ks}:{107+4*ks}], v22, s[48:51], 0 offen offset:{64*ks}")
    e("v_and_b32 v61, 2047, v60")
    e("v_sub_u32 v61, 2047, v61")
    e("v_mul_lo_u32 v61, v61, s20")
    e("v_and_b32 v62, 15, v0")
    e("v_lshlrev_b32 v62, 1, v62")
    e("v_add_u32 v61, v61, v62")
    e("v_add_u32 v61, s21, v61")
    e("buffer_load_ushort v62, v61, s[68:71], 0 offen")
    e("buffer_load_ushort v63, v61, s[48:51], 0 offen")
    e("v_and_b32 v2, 15, v1")
    for i in range(8):
        e(f"v_mov_b32 v{124+i}, 0")
    for ks in range(5):
        e(f"s_waitcnt vmcnt({6-ks})")
        e(f"v_mfma_f32_16x16x32_bf16 v[124:127], v[{104+4*ks}:{107+4*ks}], v[{64+4*ks}:{67+4*ks}], v[124:127]")
        e(f"v_mfma_f32_16x16x32_bf16 v[128:131], v[{104+4*ks}:{107+4*ks}], v[{84+4*ks}:{87+4*ks}], v[128:131]")
    e("s_nop 7")
    stamp(4)
    e("s_lshl_b32 s25, s18, 11")
    e("v_lshlrev_b32 v4, 8, v3")
    e("v_lshlrev_b32 v6, 2, v2")
    e("v_add_u32 v4, v4, v6")
    e("v_add_u32 v4, s25, v4")
    for mat in range(2):
        for i in range(4):
            e(f"ds_write_b32 v4, v{124+4*mat+i} offset:{K3_RED+1024*mat+64*i}")
    e("s_waitcnt lgkmcnt(0)")
    e("s_barrier")
    e("s_cmp_ge_u32 s18, 2")
    e("s_cbranch_scc1 K3_GUDONE")
    e("v_lshlrev_b32 v4, 2, v0")
    for w in range(4):
        e(f"ds_read_b32 v{8+w}, v4 offset:{K3_RED+2048*w}")
        e(f"ds_read_b32 v{12+w}, v4 offset:{K3_RED+2048*w+1024}")
    e("s_waitcnt lgkmcnt(0)")
    e("v_add_f32 v8, v8, v9")
    e("v_add_f32 v10, v10, v11")
    e("v_add_f32 v8, v8, v10")
    e("v_add_f32 v12, v12, v13")
    e("v_add_f32 v14, v14, v15")
    e("v_add_f32 v9, v12, v14")
    round_list([8, 9], [10])
    e("v_mul_f32 v10, 0xbfb8aa3b, v8")
    e("v_exp_f32 v10, v10")
    e("s_nop 0")
    e("v_add_f32 v10, 1.0, v10")
    e("v_rcp_f32 v11, v10")
    e("s_nop 0")
    e("v_mul_f32 v12, v8, v11")
    e("v_fma_f32 v13, -v12, v10, v8")
    e("v_fma_f32 v12, v13, v11, v12")
    e("v_cvt_pk_bf16_f32 v13, v12, v12")
    e("v_lshlrev_b32 v12, 16, v13")
    e("v_mul_f32 v12, v12, v9")
    e("v_cvt_pk_bf16_f32 v13, v12, v12")
    e("v_lshrrev_b32 v5, 4, v0")
    e("s_movk_i32 s20, 3456")
    e("v_mul_lo_u32 v5, v5, s20")
    e("v_and_b32 v6, 15, v0")
    e("v_lshlrev_b32 v6, 1, v6")
    e("v_add_u32 v5, v5, v6")
    e("v_add_u32 v5, s21, v5")
    e("buffer_store_short v13, v5, s[56:59], 0 offen sc0 sc1")
    e("s_waitcnt vmcnt(0)")
    e("K3_GUDONE:")
    stamp(5)
    e("s_barrier")
    e("s_cmp_lg_u32 s18, 0")
    e("s_cbranch_scc1 K3_WAITWG")
    e("v_mov_b32 v8, 1")
    e("s_and_b32 s26, s2, 15")
    e("s_lshl_b32 s26, s26, 4")
    e("v_mov_b32 v9, s26")
    e("v_cmp_eq_u32 vcc, 0, v1")
    e("s_and_saveexec_b64 s[30:31], vcc")
    e("buffer_atomic_add v8, v9, s[72:75], 0 offen sc1")
    e("s_mov_b64 exec, s[30:31]")
    e("s_cmp_ge_u32 s2, 40")
    e("s_cbranch_scc1 K3_END")
    e("v_and_b32 v9, 15, v1")
    e("v_cmp_gt_u32 vcc, 12, v9")
    e("v_mov_b32 v11, 6")
    e("v_mov_b32 v12, 7")
    e("v_cndmask_b32 v11, v11, v12, vcc")
    e("v_lshlrev_b32 v9, 4, v9")
    e("K3_POLL:")
    e("buffer_load_dword v10, v9, s[72:75], 0 offen sc0 sc1")
    e("s_waitcnt vmcnt(0)")
    e("v_cmp_ge_u32 vcc, v10, v11")
    e("s_nop 3")
    e("s_cmp_eq_u64 vcc, exec")
    e("s_cbranch_scc1 K3_WAITWG")
    e("s_sleep 1")
    e("s_branch K3_POLL")
    e("K3_WAITWG:")
    stamp(6)
    e("s_cmp_ge_u32 s2, 40")
    e("s_cbranch_scc1 K3_END")
    e("s_barrier")
    e("v_lshlrev_b32 v22, 4, v0")
    for i in range(7):
        e(f"s_movk_i32 s22, {4096*i}")
        e(f"buffer_load_dwordx4 v[{64+4*i}:{67+4*i}], v22, s[56:59], s22 offen sc1")
    e(f"v_add_u32 v23, {K3_GU}, v22")
    for i in range(7):
        e(f"s_waitcnt vmcnt({6-i})")
        e(f"ds_write_b128 v23, v[{64+4*i}:{67+4*i}] offset:{4096*i}")
    e("v_and_b32 v21, 7, v1")
    e("s_movk_i32 s20, 3456")
    e("v_mul_lo_u32 v22, v21, s20")
    e("v_lshlrev_b32 v23, 4, v3")
    e("v_add_u32 v22, v22, v23")
    e("s_lshl_b32 s29, s27, 6")
    e(f"s_add_u32 s29, s29, {K3_GU}")
    e("v_add_u32 v22, s29, v22")
    for i in range(4):
        e(f"v_mov_b32 v{124+i}, 0")
    e("s_waitcnt lgkmcnt(0)")
    e("s_barrier")
    for ks in range(14):
        e(f"ds_read_b128 v[{64+4*ks}:{67+4*ks}], v22 offset:{64*ks}")
    for ks in range(14):
        if ks == 13:
            e("s_cmp_ge_u32 s18, 2")
            e("s_cbranch_scc1 K3_P2DONE")
        e(f"s_waitcnt lgkmcnt({min(13-ks,15)})")
        e(f"v_mfma_f32_16x16x32_bf16 v[124:127], v[{64+4*ks}:{67+4*ks}], v[{136+4*ks}:{139+4*ks}], v[124:127]")
    e("K3_P2DONE:")
    e("s_nop 7")
    stamp(7)
    e("s_lshl_b32 s25, s18, 10")
    e("v_lshlrev_b32 v4, 8, v3")
    e("v_lshlrev_b32 v6, 2, v2")
    e("v_add_u32 v4, v4, v6")
    e("v_add_u32 v4, s25, v4")
    for i in range(4):
        e(f"ds_write_b32 v4, v{124+i} offset:{K3_RED+64*i}")
    e("s_waitcnt lgkmcnt(0)")
    e("s_barrier")
    e("s_cmp_ge_u32 s18, 2")
    e("s_cbranch_scc1 K3_END")
    e("v_lshlrev_b32 v4, 2, v0")
    for w in range(4):
        e(f"ds_read_b32 v{8+w}, v4 offset:{K3_RED+1024*w}")
    e("v_lshrrev_b32 v24, 11, v60")
    e("v_and_b32 v25, 0x7fff, v24")
    e("v_xor_b32 v26, 0xffff, v24")
    e("v_cmp_lt_u32 vcc, 0x7fff, v24")
    e("s_nop 1")
    e("v_cndmask_b32 v24, v26, v25, vcc")
    e("v_lshlrev_b32 v24, 16, v24")
    e("v_mul_f32 v25, 0xbfb8aa3b, v24")
    e("v_exp_f32 v25, v25")
    e("s_nop 0")
    e("v_add_f32 v25, 1.0, v25")
    e("v_rcp_f32 v26, v25")
    e("s_nop 0")
    e("v_fma_f32 v27, -v26, v25, 1.0")
    e("v_fma_f32 v26, v27, v26, v26")
    e("v_cvt_pk_bf16_f32 v27, v26, v26")
    e("v_lshlrev_b32 v26, 16, v27")
    e("s_waitcnt lgkmcnt(0)")
    e("v_add_f32 v8, v8, v9")
    e("v_add_f32 v10, v10, v11")
    e("v_add_f32 v8, v8, v10")
    e("v_cvt_pk_bf16_f32 v9, v8, v8")
    e("v_lshlrev_b32 v8, 16, v9")
    e("v_mul_f32 v8, v8, v26")
    e("v_cvt_pk_bf16_f32 v9, v8, v8")
    e("v_lshlrev_b32 v8, 16, v9")
    e("v_lshlrev_b32 v62, 16, v62")
    e("v_lshlrev_b32 v63, 16, v63")
    e("v_add_f32 v8, v8, v63")
    e("v_cvt_pk_bf16_f32 v9, v8, v8")
    e("v_lshlrev_b32 v8, 16, v9")
    e("v_add_f32 v8, v8, v62")
    e("v_cvt_pk_bf16_f32 v9, v8, v8")
    e("buffer_store_short v9, v61, s[64:67], 0 offen")
    if "stamp3" in EXP:
        e("s_waitcnt vmcnt(0)")
        e("s_memtime s[92:93]")
        e("s_waitcnt lgkmcnt(0)")
        e("s_cmp_lg_u32 s2, 5"); e("s_cbranch_scc1 K3_END")
        e("s_cmp_lg_u32 s18, 0"); e("s_cbranch_scc1 K3_END")
        for i in range(8):
            e(f"s_sub_u32 s{78+2*i}, s{78+2*i}, s76")
            e(f"v_mov_b32 v{12+i}, s{78+2*i}")
        e("v_mov_b32 v10, 64")
        e("buffer_store_dwordx4 v[12:15], v10, s[72:75], 0 offen")
        e("buffer_store_dwordx4 v[16:19], v10, s[72:75], 0 offen offset:16")
    e("K3_END:")
    e("s_endpgm")
    kernel_desc(name, 192)

def main():
    hdr = open(OUT0 + ".ref").read().split("; Override launch geometry")[0]
    e(hdr.rstrip("\n"))
    e(f"; @launch kernel=kvt_kernel grid=(320,1,1) block=(256,1,1) lds={K0_LDS}")
    e(f"; @launch kernel=conv_kernel grid=(1055,1,1) block=(128,1,1) lds={K1_LDS}")
    e(f"; @launch kernel=rows_kernel grid=(256,1,1) block=(512,1,1) lds={K2_LDS}")
    e(f"; @launch kernel=ffn_kernel grid=(108,1,1) block=(256,1,1) lds={K3_LDS}")
    if "nop4" in EXP:
        for i in range(4):
            e(f"; @launch kernel=nop_kernel grid=(1,1,1) block=(64,1,1) lds=0")
    e('.amdgcn_target "amdgcn-amd-amdhsa--gfx950"')
    e(".text")
    if "nop4" in EXP:
        kernel_header("nop_kernel"); e("s_endpgm"); kernel_desc("nop_kernel", 8)
    k0(); k1(); k2(); k3()
    e('.section .rodata,"a"')
    for k in KD:
        e(k)
    open(OUT, "w").write("\n".join(L) + "\n")

main()
```
